```python
import torch

def _softmax(x, axis=-1):
    return torch.softmax(x, dim=axis)
def _gelu(x):
    return torch.nn.functional.gelu(x, approximate="tanh")
def _silu(x):
    return torch.nn.functional.silu(x)
def _sigmoid(x):
    return torch.sigmoid(x)
def _layernorm(x, axis=-1, eps=1e-5):
    m = x.mean(dim=axis, keepdim=True)
    v = x.var(dim=axis, keepdim=True, unbiased=False)
    return (x - m) / torch.sqrt(v + eps)
def _scatter_add(tgt, idx, src, axis=0):
    return tgt.clone().index_add_(axis, idx, src)
def _segment_sum(src, seg, n):
    out = torch.zeros((n,) + src.shape[1:], dtype=src.dtype)
    return out.index_add_(0, seg, src)
def _pad(x, pw):
    flat = tuple(v for pair in reversed(pw) for v in pair)
    return torch.nn.functional.pad(x, flat)

kernel_name = 'standalone__gqa_block_cached__decode'

def setup_inputs():

    _w = (lambda a: (lambda t: t.to(torch.bfloat16) if t.is_floating_point() else t)(torch.as_tensor(a)))
    B, Sq, D = 1, 1, 512
    Hq, Hkv, Sk, Dh = 32, 8, 65536, 128
    assert Hq % Hkv == 0, (Hq, Hkv)
    return {
        "x": _w((lambda *s: torch.randn(*s, dtype=torch.bfloat16) * 0.8)(B, Sq, D)),
        "k_cache": _w((lambda *s: torch.randn(*s, dtype=torch.bfloat16) * 0.8)(B, Hkv, Sk, Dh)),
        "v_cache": _w((lambda *s: torch.randn(*s, dtype=torch.bfloat16) * 0.05)(B, Hkv, Sk, Dh)),
        "wq": _w((lambda *s: torch.randn(*s, dtype=torch.bfloat16) * 0.8)(D, Hq * Dh) * (D ** -0.5)),
        "wo": _w((lambda *s: torch.randn(*s, dtype=torch.bfloat16) * 0.05)(Hq * Dh, D) * ((Hq * Dh) ** -0.5)),
    }

def reference(x, k_cache, v_cache, wq, wo):
    B, Sq, D = x.shape
    Hq, Dh = 32, 128
    Hkv = k_cache.shape[1]
    rep = Hq // Hkv
    q = (lambda x, *d: x.permute(*d))((x @ wq).reshape(B, Sq, Hq, Dh), 0, 2, 1, 3)
    k = (lambda x, n, axis: torch.repeat_interleave(x, n, dim=axis))(k_cache, rep, axis=1)
    v = (lambda x, n, axis: torch.repeat_interleave(x, n, dim=axis))(v_cache, rep, axis=1)
    scores = torch.einsum("bhqd,bhkd->bhqk", q, k) * (Dh ** -0.5)
    p = _softmax(scores, axis=-1)
    o = torch.einsum("bhqk,bhkd->bhqd", p, v)
    return (lambda x, *d: x.permute(*d))(o, 0, 2, 1, 3).reshape(B, Sq, Hq * Dh) @ wo
```

```python
import sys, math, struct

KNAME = "standalone__gqa_block_cached__decode_kernel"
HEADER_COMMENT = """; Kernarg layout for this problem (64 bytes, ptrs only, base s[0:1]):
"""
EPOCH = 0
MG = 0x9000
LG = 0x70000
P2 = 0x10000
QG = 0x60000
P1 = 0x100000
WS_USED = 0x200000
STAMPS = 0x2000000
C1 = math.log2(math.e) / math.sqrt(128.0)
def f32bits(x): return struct.unpack("<I", struct.pack("<f", x))[0]

class Asm:
    def __init__(self): self.l = []
    def __call__(self, s): self.l.append("  " + s)
    def label(self, s): self.l.append(s + ":")
    def text(self): return "\n".join(self.l) + "\n"

def gen(path, stamps=False, maxpoll=20000, pace=4, RL=7, NVL=8, noq=False, notail=False, qst="sc1", qld="sc1", D=7, nohelper=False, hstop=0, qsleep=0, exp=None, nomgst=False, nomgld=False, nowo=False, nomid=False, pretouch=False, csleep=4, b0pos='issue', opt=True, prog=False, linK=False, early=False, kb=7, jb=0, dbgst=False, ilv=False, spec=0, p2t=False, fsleep=1, pol='nt'):
    A = Asm()
    NST = 10
    RINGB = RL * 4096
    L_SC = 4 * RINGB
    L_Q = L_SC + 32768
    L_TAG = L_Q + 1024
    L_M = L_TAG + 64
    L_L = L_M + 64
    LDS_BYTES = L_L + 64
    assert LDS_BYTES <= 163840
    VL0 = 80
    def slot(s, r=0): return VL0 + 16*s + r
    mode = {"stream": False}
    def stamp(j, force=False):
        if prog and mode["stream"] and not force and j not in (0, 9): return
        if stamps: A(f"s_memrealtime s[{60+2*j}:{61+2*j}]")
    lab = [0]
    def pstamp(vals):
        if not prog: return
        for v, j in vals:
            lab[0] += 1
            A(f"s_cmp_lg_u32 s47, {v}")
            A(f"s_cbranch_scc1 L_ps{lab[0]}")
            stamp(j, True)
            A.label(f"L_ps{lab[0]}")
    DPPF = "row_mask:0xf bank_mask:0xf"
    A("s_cmp_ge_u32 s2, 256")
    A("s_cbranch_scc1 L_end")
    A("s_load_dwordx16 s[4:19], s[0:1], 0")
    stamp(0)
    A("v_lshrrev_b32 v1, 6, v0")
    A("v_and_b32 v0, 63, v0")
    A("s_and_b32 s20, s2, 7")
    A("v_readfirstlane_b32 s3, v1")
    A("s_lshr_b32 s21, s2, 3")
    A("s_mov_b32 s27, 0x00020000")
    A("s_mov_b32 s31, 0x00020000")
    A("s_mov_b32 s39, 0x00020000")
    A(f"s_mov_b32 s38, {WS_USED}")
    A("s_cmp_lg_u32 s3, 0")
    A("s_cbranch_scc1 L_stream")
    if nohelper:
        if pretouch:
            A("s_waitcnt lgkmcnt(0)")
            A("s_mov_b32 s36, s18")
            A("s_mov_b32 s37, s19")
            A("v_lshlrev_b32 v1, 2, v0")
            A(f"s_mov_b32 s40, {MG}")
            A("buffer_load_dword v2, v1, s[36:39], s40 offen nt")
            A("s_mov_b32 s36, s12")
            A("s_mov_b32 s37, s13")
            A("buffer_load_dword v3, v1, s[36:39], 0 offen nt")
            A("s_add_u32 s36, s12, 0x200000")
            A("s_addc_u32 s37, s13, 0")
            A("buffer_load_dword v3, v1, s[36:39], 0 offen nt")
        A("s_barrier")
        A("s_endpgm")
    A("s_setprio 3")
    A("v_lshrrev_b32 v3, 2, v0")
    A("v_and_b32 v4, 3, v0")
    A("v_lshlrev_b32 v1, 5, v3")
    A("v_lshlrev_b32 v2, 17, v3")
    A("v_lshl_add_u32 v2, v4, 4, v2")
    A("s_and_b32 s56, s21, 15")
    A("s_lshr_b32 s57, s21, 4")
    A("s_lshl_b32 s22, s20, 10")
    A("s_lshl_b32 s23, s56, 6")
    A("s_add_u32 s22, s22, s23")
    A("s_lshl_b32 s23, s57, 21")
    A("s_add_u32 s22, s22, s23")
    A("s_sub_u32 s30, 0x400000, s22")
    A("s_mov_b32 s26, 1024")
    A("s_lshl_b32 s58, s57, 9")
    A("s_mov_b32 s59, 8192")
    A("s_waitcnt lgkmcnt(0)")
    A("s_mov_b32 s24, s4")
    A("s_mov_b32 s25, s5")
    A("s_add_u32 s28, s10, s22")
    A("s_addc_u32 s29, s11, 0")
    A("s_load_dword s40, s[18:19], 0")
    A("buffer_load_dwordx4 v[24:27], v1, s[24:27], s58 offen")
    A("buffer_load_dwordx4 v[28:31], v1, s[24:27], s58 offen offset:16")
    A("buffer_load_dwordx4 v[40:43], v2, s[28:31], 0 offen nt")
    for i in range(1, 16):
        A(f"buffer_load_dwordx4 v[{40+4*i}:{43+4*i}], v2, s[28:31], s59 offen nt")
        if i < 15: A("s_add_u32 s59, s59, 8192")
    if b0pos == "issue": A("s_barrier")
    stamp(3)
    A("s_mov_b32 s36, s18")
    A("s_mov_b32 s37, s19")
    A("s_mov_b32 s41, 0x05040100")
    A("s_mov_b32 s42, 0x07060302")
    A("s_lshl_b32 s43, s20, 13")
    A(f"s_add_u32 s43, s43, {QG}")
    A("s_add_u32 s45, s43, 4096")
    A("s_lshl_b32 s44, s57, 12")
    A("s_add_u32 s44, s44, s43")
    A("s_lshl_b32 s23, s56, 6")
    A("s_add_u32 s44, s44, s23")
    A("v_lshrrev_b32 v3, 4, v0")
    A("v_lshlrev_b32 v3, 10, v3")
    A("v_lshl_add_u32 v3, v4, 4, v3")
    A("v_lshlrev_b32 v32, 4, v0")
    A(f"v_add_u32 v33, {L_Q}, v32")
    for ip in range(8):
        if ip % 2 == 0: A(f"s_waitcnt vmcnt({12-2*ip})")
        if ip == 0: stamp(4)
        if ip == 6: stamp(5)
        if ip == 6 and b0pos == "data": A("s_barrier")
        for dw in range(4):
            a_ = 40+8*ip+dw; b_ = 44+8*ip+dw
            t0 = 16 + (2*dw) % 8; t1 = 17 + (2*dw) % 8
            A(f"v_perm_b32 v{t0}, v{b_}, v{a_}, s41")
            A(f"v_perm_b32 v{t1}, v{b_}, v{a_}, s42")
            c0 = "0" if ip == 0 else f"v{8+2*dw}"
            c1 = "0" if ip == 0 else f"v{9+2*dw}"
            A(f"v_dot2_f32_bf16 v{8+2*dw}, v{t0}, v{24+ip}, {c0}")
            A(f"v_dot2_f32_bf16 v{9+2*dw}, v{t1}, v{24+ip}, {c1}")
    A("s_waitcnt lgkmcnt(0)")
    A("s_mul_i32 s40, s40, 0x41c64e6d")
    A("s_add_u32 s40, s40, 0x3039")
    A("v_mov_b32 v17, s40")
    for i in range(4): A(f"v_permlane32_swap_b32 v{8+i}, v{12+i}")
    A("v_mov_b32 v19, s40")
    for i in range(4): A(f"v_add_f32 v{8+i}, v{8+i}, v{12+i}")
    A("s_nop 1")
    for i in range(2): A(f"v_permlane16_swap_b32 v{8+i}, v{10+i}")
    A("s_mov_b32 s46, 0x000f000f")
    for i in range(2): A(f"v_add_f32 v{8+i}, v{8+i}, v{10+i}")
    A("s_mov_b32 s47, 0x000f000f")
    A("s_nop 0")
    A(f"v_add_f32_dpp v8, v8, v8 row_ror:4 {DPPF}")
    A(f"v_add_f32_dpp v9, v9, v9 row_ror:4 {DPPF}")
    A("s_nop 0")
    A(f"v_add_f32_dpp v16, v8, v8 row_ror:8 {DPPF}")
    A(f"v_add_f32_dpp v18, v9, v9 row_ror:8 {DPPF}")
    if exp == "sleep":
        for _ in range(6): A("s_sleep 15")
    if exp == "latestore":
        for _ in range(24): A("s_sleep 15")
    if exp == "prio0": A("s_setprio 0")
    if hstop == 1: A("s_endpgm")
    A("s_mov_b64 exec, s[46:47]")
    if exp == "ntst": qst = "nt"
    if exp == "contig":
        A("v_lshrrev_b32 v3, 4, v0")
        A("v_lshlrev_b32 v3, 6, v3")
        A("v_lshl_add_u32 v3, v4, 4, v3")
        A("s_lshl_b32 s44, s21, 8")
        A("s_add_u32 s44, s44, s43")
    if exp == "atomic":
        A("s_mov_b64 exec, 1")
        A("v_mov_b32 v3, 0")
        A("s_lshl_b32 s44, s20, 8")
        A(f"s_add_u32 s44, s44, {QG}")
        A("buffer_atomic_add v16, v3, s[36:39], s44 offen sc1")
    elif exp == "one":
        A("s_mov_b64 exec, 1")
        A("v_mov_b32 v3, 0")
        A("s_lshl_b32 s44, s2, 8")
        A(f"s_add_u32 s44, s44, {QG}")
        A(f"buffer_store_dwordx4 v[16:19], v3, s[36:39], s44 offen {qst}")
    else:
        A(f"buffer_store_dwordx4 v[16:19], v3, s[36:39], s44 offen {qst}")
    A("s_mov_b64 exec, -1")
    if b0pos == "pub": A("s_barrier")
    if b0pos == "ack":
        A("s_waitcnt vmcnt(0)")
        A("s_barrier")
    stamp(1)
    if hstop == 2: A("s_endpgm")
    A(f"s_mov_b32 s48, {maxpoll}")
    for _ in range(qsleep): A("s_sleep 15")
    def qloads(fl):
        for k in range(8):
            so = "s43" if k < 4 else "s45"
            A(f"buffer_load_dwordx4 v[{40+4*k}:{43+4*k}], v32, s[36:39], {so} offen offset:{1024*(k%4)} {fl}")
    if opt:
        qloads("nt")
        A("s_branch L_qchk")
    A.label("L_qpoll")
    qloads(qld)
    A.label("L_qchk")
    A("s_waitcnt vmcnt(0)")
    if exp == "poll1": A("s_mov_b64 exec, -1")
    tg = [41 + 2*i for i in range(16)]
    A(f"v_min3_u32 v24, v{tg[0]}, v{tg[1]}, v{tg[2]}")
    A(f"v_max3_u32 v25, v{tg[0]}, v{tg[1]}, v{tg[2]}")
    for i in range(3, 15, 2):
        A(f"v_min3_u32 v24, v24, v{tg[i]}, v{tg[i+1]}")
        A(f"v_max3_u32 v25, v25, v{tg[i]}, v{tg[i+1]}")
    A(f"v_min_u32 v24, v24, v{tg[15]}")
    A(f"v_max_u32 v25, v25, v{tg[15]}")
    A("v_cmp_ne_u32 vcc, v24, v19")
    A("v_cmp_ne_u32 s[46:47], v25, v19")
    A("s_sub_u32 s48, s48, 1")
    A("s_or_b64 vcc, vcc, s[46:47]")
    A("s_cbranch_scc0 L_qdone")
    A("s_cmp_eq_u32 s48, 0")
    A("s_cbranch_scc1 L_qdone")
    A("s_sleep 15" if qsleep else "s_sleep 1")
    A("s_branch L_qpoll")
    A.label("L_qdone")
    for k in range(4):
        A(f"v_add_f32 v{40+4*k}, v{40+4*k}, v{56+4*k}")
        A(f"v_add_f32 v{42+4*k}, v{42+4*k}, v{58+4*k}")
    for k in range(4):
        A(f"v_cvt_pk_bf16_f32 v{8+k}, v{40+4*k}, v{42+4*k}")
    A(f"v_mov_b32 v34, {L_TAG}")
    A("ds_write_b128 v33, v[8:11]")
    A("ds_write_b32 v34, v19")
    A("s_waitcnt lgkmcnt(0)")
    stamp(2)
    if not noq: A("s_barrier")
    if stamps:
        A("s_mov_b32 s22, 4")
        A("s_branch L_stamps")
    A("s_endpgm")
    A.label("L_stream")
    mode["stream"] = True
    A("s_sub_u32 s22, s3, 1")
    A("v_lshrrev_b32 v3, 4, v0")
    A("v_and_b32 v2, 15, v0")
    A("v_lshlrev_b32 v6, 4, v0")
    A("s_lshl_b32 s46, s21, 2")
    A("s_add_u32 s46, s46, s22")
    if jb:
        A(f"s_and_b32 s47, s46, {(1<<kb)-1}")
        A(f"s_lshr_b32 s46, s46, {kb}")
        A(f"s_lshl_b32 s46, s46, {kb+jb}")
        A("s_add_u32 s46, s46, s47")
    A("s_lshl_b32 s46, s46, 12")
    SMALL = 4096 << kb
    BIG = (4096 << (7 + jb)) - ((1 << jb) - 1) * SMALL
    A(f"s_mov_b32 s80, {SMALL}")
    def tadv_static(n):
        A(f"s_add_u32 s44, s44, {SMALL if (jb and (n + 1) % (1 << jb)) else BIG}")
    def tadv():
        if not jb:
            A(f"s_add_u32 s44, s44, {BIG}")
            return
        A("s_add_u32 s81, s81, 1")
        A(f"s_and_b32 s82, s81, {(1<<jb)-1}")
        A(f"s_cselect_b32 s82, s80, {BIG}")
        A("s_add_u32 s44, s44, s82")
    A("s_lshl_b32 s23, s20, 24")
    A("s_mov_b32 s26, 0x1000000")
    A("s_mov_b32 s30, 0x1000000")
    A("s_mov_b32 s44, s46")
    A(f"s_mul_i32 s84, s22, {RINGB}")
    A("s_waitcnt lgkmcnt(0)")
    A("s_add_u32 s24, s6, s23")
    A("s_addc_u32 s25, s7, 0")
    A("s_add_u32 s28, s8, s23")
    A("s_addc_u32 s29, s9, 0")
    A("s_barrier")
    n_iss = 0
    def pacewait():
        if pace and n_iss >= pace: A(f"s_waitcnt vmcnt({4*(pace-1)})")
    for s in range(NVL):
        pacewait()
        for t in range(4):
            A(f"buffer_load_dwordx4 v[{slot(s,4*t)}:{slot(s,4*t+3)}], v6, s[28:31], s44 offen offset:{1024*t} {pol}")
        tadv_static(s)
        n_iss += 1
    A("s_mov_b32 s45, s44")
    A("s_mov_b32 s44, s46")
    def dma():
        for t in range(4):
            A(f"buffer_load_dwordx4 v6, s[24:27], s44 offen offset:{1024*t} {pol} lds")
    for s in range(RL):
        A(f"s_add_u32 m0, s84, {4096*s}")
        pacewait()
        if not (pace and n_iss >= pace): A("s_nop 0")
        dma()
        tadv_static(s)
        n_iss += 1
    A(f"s_mov_b32 s81, {RL}")
    stamp(1)
    A("v_bfe_u32 v1, v0, 2, 2")
    A("v_and_b32 v4, 3, v0")
    A("s_mov_b32 s36, s18")
    A("s_mov_b32 s37, s19")
    A(f"s_mov_b32 s48, {f32bits(C1):#x}")
    A("s_lshr_b32 s49, s21, 2")
    A("s_lshl_b32 s50, s20, 3")
    A("s_add_u32 s50, s50, s49")
    A("s_and_b32 s51, s21, 3")
    A("s_lshl_b32 s52, s50, 16")
    A("s_lshl_b32 s53, s51, 8")
    A("s_add_u32 s52, s52, s53")
    A("s_add_u32 s32, s12, s52")
    A("s_addc_u32 s33, s13, 0")
    A("s_mov_b32 s34, 64768")
    A("s_mov_b32 s35, 0x00020000")
    A("s_lshl_b32 s54, s22, 13")
    A(f"s_add_u32 s54, s54, {L_SC}")
    A("v_lshlrev_b32 v35, 2, v0")
    A("v_add_u32 v35, s54, v35")
    A("v_mov_b32 v7, v35")
    A("v_lshlrev_b32 v56, 10, v4")
    A("v_lshl_add_u32 v56, v1, 8, v56")
    A("v_lshl_add_u32 v56, v3, 4, v56")
    if linK: A("v_mov_b32 v56, v6")
    A("s_mov_b32 s96, 0x22222222")
    A("s_mov_b32 s97, 0x22222222")
    A("s_mov_b32 s98, 0x44444444")
    A("s_mov_b32 s99, 0x44444444")
    A("s_mov_b32 s100, 0x88888888")
    A("s_mov_b32 s101, 0x88888888")
    A("v_mov_b32 v36, 0xffff")
    A("v_mov_b32 v37, 0xffff0000")
    A("v_cndmask_b32 v33, v36, v37, s[96:97]")
    A("v_cndmask_b32 v34, 0, v36, s[98:99]")
    A("v_cndmask_b32 v33, v33, 0, s[98:99]")
    A("v_cndmask_b32 v34, v34, v37, s[100:101]")
    A("v_cndmask_b32 v33, v33, 0, s[100:101]")
    A("v_mov_b32 v29, 0xff800000")
    A("v_lshlrev_b32 v36, 8, v1")
    A("v_lshl_add_u32 v36, v3, 4, v36")
    A(f"v_add_u32 v36, {L_Q}, v36")
    A(f"v_mov_b32 v37, {L_TAG}")
    A("s_mov_b32 s47, 0")
    A("s_mov_b32 s85, s84")
    A(f"s_add_u32 s86, s84, {RINGB}")
    if not noq: A("s_barrier")
    for m in range(4):
        A(f"ds_read_b128 v[{40+4*m}:{43+4*m}], v36 offset:{64*m}")
    A("ds_read_b32 v39, v37")
    A("v_add_u32 v60, s85, v56")
    A(f"s_add_u32 s83, s84, {4096*(D % RL)}")
    stamp(2)
    def advance(issue=True):
        A("s_add_u32 s85, s85, 4096")
        A("s_cmp_eq_u32 s85, s86")
        A("s_cselect_b32 s85, s84, s85")
        if issue:
            A("s_add_u32 s83, s83, 4096")
            A("s_cmp_eq_u32 s83, s86")
            A("s_cselect_b32 s83, s84, s83")
    def ktile(wait, issue, loopctl):
        A(f"s_waitcnt vmcnt({wait})")
        for m in range(4):
            A(f"ds_read_b128 v[{64+4*m}:{67+4*m}], v60 offset:{(1024 if linK else 64)*m}")
        if issue:
            A("s_mov_b32 m0, s83")
            A(f"s_cmp_lg_u32 s47, {32-D}")
            A("s_cbranch_scc1 L_knosw")
            A("s_mov_b32 s24, s28")
            A("s_mov_b32 s25, s29")
            A("s_mov_b32 s44, s45")
            A(f"s_mov_b32 s81, {NVL}")
            A.label("L_knosw")
            if early:
                dma()
                tadv()
        A("s_add_u32 s47, s47, 1")
        for m in range(4):
            A(f"s_waitcnt lgkmcnt({3-m})")
            c = "0" if m == 0 else "v[12:15]"
            A(f"v_mfma_f32_16x16x32_bf16 v[12:15], v[{64+4*m}:{67+4*m}], v[{40+4*m}:{43+4*m}], {c}")
        if issue and not early:
            dma()
            tadv()
        else:
            A("s_nop 1")
        advance(True)
        A("v_add_u32 v60, s85, v56")
        A("v_cndmask_b32 v28, v12, v13, s[96:97]")
        A("v_cndmask_b32 v28, v28, v14, s[98:99]")
        A("v_cndmask_b32 v28, v28, v15, s[100:101]")
        if loopctl: A("s_cmp_lt_u32 s47, 32")
        A("v_max_f32 v29, v29, v28")
        A("ds_write_b32 v7, v28")
        A("v_add_u32 v7, 256, v7")
    for j in range(RL - D):
        ktile(4*(RL-1-j), False, False)
    stamp(1, True)
    A.label("L_kloop")
    pstamp([(8, 2), (16, 3), (24, 4)])
    ktile(4*D-4, True, True)
    A("s_cbranch_scc1 L_kloop")
    stamp(3)
    A(f"v_mov_b32 v36, {L_M}")
    A(f"v_max_f32_dpp v29, v29, v29 quad_perm:[1,0,3,2] {DPPF}")
    A("v_lshl_add_u32 v37, v1, 4, v36")
    A("s_lshl_b32 s55, s22, 2")
    A(f"v_max_f32_dpp v29, v29, v29 quad_perm:[2,3,0,1] {DPPF}")
    A("v_add_u32 v36, s55, v37")
    for sw in ("v_permlane16_swap_b32", "v_permlane32_swap_b32"):
        A("v_mov_b32 v30, v29")
        A("s_nop 1")
        A(f"{sw} v29, v30")
        A("s_nop 0")
        A("v_max_f32 v29, v29, v30")
    A("ds_write_b32 v36, v29")
    A("s_waitcnt lgkmcnt(0)")
    if not nomid: A("s_barrier")
    A("ds_read_b128 v[12:15], v37")
    A("ds_read_b32 v28, v35")
    A("v_mov_b32 v31, 0")
    A("s_lshl_b32 s55, s20, 10")
    A("s_lshl_b32 s56, s21, 5")
    A("s_add_u32 s55, s55, s56")
    A(f"s_add_u32 s55, s55, {MG}")
    A("v_lshlrev_b32 v36, 3, v1")
    A("v_add_u32 v60, s85, v6")
    A("s_waitcnt lgkmcnt(1)")
    A("v_max3_f32 v38, v12, v13, v14")
    A("v_max_f32 v38, v38, v15")
    for r in range(12, 20): A(f"v_mov_b32 v{r}, 0")
    A("v_mul_f32 v30, s48, v38")
    A("v_sub_f32 v30, 0, v30")
    A("s_cmp_lg_u32 s22, 0")
    A("s_cbranch_scc1 L_nopub")
    if nomgst: A("s_branch L_nopub")
    A("s_mov_b64 exec, 0x1111")
    A("buffer_store_dwordx2 v[38:39], v36, s[36:39], s55 offen sc1")
    A("s_mov_b64 exec, -1")
    A.label("L_nopub")
    stamp(4)
    def softmax(sreg):
        A(f"v_fma_f32 v37, v{sreg}, s48, v30")
        A("v_exp_f32 v37, v37")
        A("s_nop 0")
        A("v_cvt_pk_bf16_f32 v32, v37, v37")
        A("v_add_f32 v31, v31, v37")
        A("s_nop 0")
        for t in range(4):
            A(f"v_and_b32_dpp v{20+2*t}, v32, v33 quad_perm:[{t},{t},{t},{t}] {DPPF}")
            A(f"v_and_b32_dpp v{21+2*t}, v32, v34 quad_perm:[{t},{t},{t},{t}] {DPPF}")
    def pv(base, t):
        A(f"v_mfma_f32_16x16x16_bf16 v[12:15], v[{base+4*t}:{base+4*t+1}], v[{20+2*t}:{21+2*t}], v[12:15]")
        A(f"v_mfma_f32_16x16x16_bf16 v[16:19], v[{base+4*t+2}:{base+4*t+3}], v[{20+2*t}:{21+2*t}], v[16:19]")
    def vtile(wait, issue, extra=None):
        A(f"s_waitcnt vmcnt({wait})")
        A("ds_read_b32 v28, v35")
        for t in range(4):
            A(f"ds_read_b128 v[{64+4*t}:{67+4*t}], v60 offset:{1024*t}")
        if extra is not None: A(f"ds_read_b32 v29, v61 offset:{256*extra}")
        ex = 1 if extra is not None else 0
        if issue: A("s_mov_b32 m0, s83")
        A("v_add_u32 v35, 256, v35")
        if issue and early:
            dma()
            tadv()
        A(f"s_waitcnt lgkmcnt({4+ex})")
        softmax(28)
        for t in range(4):
            A(f"s_waitcnt lgkmcnt({3-t+ex})")
            pv(64, t)
        if issue and not early:
            dma()
            tadv()
        advance(issue)
        A("v_add_u32 v60, s85, v6")
        if extra is not None:
            A("s_waitcnt lgkmcnt(0)")
            softmax(29)
            A("s_nop 0")
            for t in range(4): pv(slot(extra), t)
    def wo_fetch():
        A("v_lshlrev_b32 v5, 12, v3")
        A("v_lshl_add_u32 v5, v2, 4, v5")
        for T in range(1, 4): A(f"s_mov_b32 s{88+T}, {16384*T}")
        A("s_cmp_lg_u32 s22, 0")
        A("s_cbranch_scc1 L_nowo")
        if nowo: A("s_branch L_nowo")
        for T in range(4):
            so = "0" if T == 0 else f"s{88+T}"
            for t in range(4):
                A(f"buffer_load_dwordx4 v[{slot(T,4*t)}:{slot(T,4*t+3)}], v5, s[32:35], {so} offen offset:{1024*t} nt")
        A.label("L_nowo")
    if ilv:
        A("v_mov_b32 v61, v35")
        A(f"v_add_u32 v35, {256*NVL}, v35")
        for s in range(NVL):
            vtile(4*D-4, True, extra=s)
            if s == min(3, NVL-1): wo_fetch()
        if NVL == 0: wo_fetch()
        A(f"s_mov_b32 s47, {2*NVL}")
    else:
        for s in range(NVL):
            sc, sn = (28, 29) if s % 2 == 0 else (29, 28)
            A("s_waitcnt lgkmcnt(0)")
            if s + 1 < NVL: A(f"ds_read_b32 v{sn}, v35 offset:{256*(s+1)}")
            softmax(sc)
            A("s_nop 0")
            for t in range(4): pv(slot(s), t)
        A(f"v_add_u32 v35, {256*NVL}, v35")
        wo_fetch()
        A(f"s_mov_b32 s47, {NVL}")
    stamp(5, True)
    A.label("L_vloop")
    pstamp([(16, 6), (24, 7)])
    A("s_add_u32 s47, s47, 1")
    vtile(4*D-4, True)
    A(f"s_cmp_lt_u32 s47, {32-D}")
    A("s_cbranch_scc1 L_vloop")
    A("v_lshlrev_b32 v36, 7, v4")
    A("v_lshl_add_u32 v36, v3, 5, v36")
    A("v_lshl_add_u32 v36, v1, 3, v36")
    A("s_lshl_b32 s55, s20, 10")
    A(f"s_add_u32 s55, s55, {MG}")
    if not nomgld:
        fl = "nt" if opt else "sc1"
        A(f"buffer_load_dwordx2 v[8:9], v36, s[36:39], s55 offen {fl}")
        A(f"buffer_load_dwordx2 v[10:11], v36, s[36:39], s55 offen offset:512 {fl}")
    for s in range(D):
        vtile(4*(D-1-s) + (0 if nomgld else 2), False)
    A("s_waitcnt vmcnt(0)")
    stamp(5)
    stamp(8, True)
    if stamps and not prog and not dbgst:
        A("s_getreg_b32 s76, hwreg(HW_REG_HW_ID)")
        A("s_getreg_b32 s77, hwreg(HW_REG_XCC_ID)")
    if notail: A("s_branch L_wavedone")
    A(f"s_mov_b32 s57, {maxpoll}")
    A.label("L_mchk")
    A("v_cmp_ne_u32 vcc, v9, v39")
    A("v_cmp_ne_u32 s[58:59], v11, v39")
    A("s_sub_u32 s57, s57, 1")
    A("s_or_b64 vcc, vcc, s[58:59]")
    A("s_cbranch_scc0 L_mok")
    A("s_cmp_eq_u32 s57, 0")
    A("s_cbranch_scc1 L_mok")
    A("s_sleep 2")
    A("buffer_load_dwordx2 v[8:9], v36, s[36:39], s55 offen sc1")
    A("buffer_load_dwordx2 v[10:11], v36, s[36:39], s55 offen offset:512 sc1")
    A("s_waitcnt vmcnt(0)")
    A("s_branch L_mchk")
    A.label("L_mok")
    A("v_max_f32 v8, v8, v10")
    A(f"v_add_f32_dpp v31, v31, v31 quad_perm:[1,0,3,2] {DPPF}")
    A("s_nop 0")
    A(f"v_max_f32_dpp v8, v8, v8 quad_perm:[1,0,3,2] {DPPF}")
    A(f"v_add_f32_dpp v31, v31, v31 quad_perm:[2,3,0,1] {DPPF}")
    A("s_nop 0")
    A(f"v_max_f32_dpp v8, v8, v8 quad_perm:[2,3,0,1] {DPPF}")
    for sw in ("v_permlane16_swap_b32", "v_permlane32_swap_b32"):
        A("v_mov_b32 v10, v31")
        A("v_mov_b32 v9, v8")
        A("s_nop 1")
        A(f"{sw} v31, v10")
        A(f"{sw} v8, v9")
        A("s_nop 1")
        A("v_add_f32 v31, v31, v10")
        A("v_max_f32 v8, v8, v9")
    A("v_fma_f32 v8, v8, s48, v30")
    A("v_exp_f32 v8, -v8")
    A("v_mul_u32_u24 v9, 672, v1")
    A("v_mul_u32_u24 v10, 144, v3")
    A("v_add3_u32 v9, v9, v10, s54")
    A("v_lshl_add_u32 v9, v4, 2, v9")
    A(f"v_mov_b32 v10, {L_L}")
    A("v_lshl_add_u32 v10, v1, 4, v10")
    A("s_lshl_b32 s55, s22, 2")
    A("v_add_u32 v10, s55, v10")
    A("v_mul_f32 v31, v31, v8")
    for r in range(12, 20): A(f"v_mul_f32 v{r}, v{r}, v8")
    for r in range(4):
        A(f"ds_write_b32 v9, v{12+r} offset:{32*r}")
        A(f"ds_write_b32 v9, v{16+r} offset:{32*r+16}")
    A("ds_write_b32 v10, v31")
    A("s_mul_i32 s55, s22, 672")
    A(f"s_add_u32 s55, s55, {L_SC}")
    A("v_mul_u32_u24 v9, 144, v3")
    A("v_lshl_add_u32 v9, v2, 3, v9")
    A("v_add_u32 v9, s55, v9")
    A("s_lshl_b32 s55, s22, 4")
    A(f"s_add_u32 s55, s55, {L_L}")
    A("v_mov_b32 v10, s55")
    A("v_lshrrev_b32 v11, 5, v0")
    A("v_lshlrev_b32 v11, 14, v11")
    A("v_and_b32 v28, 31, v0")
    A("v_lshl_add_u32 v11, v28, 4, v11")
    A("s_lshl_b32 s55, s20, 3")
    A("s_lshl_b32 s56, s22, 1")
    A("s_add_u32 s55, s55, s56")
    A("s_lshl_b32 s55, s55, 14")
    A("s_lshl_b32 s56, s21, 9")
    A("s_add_u32 s55, s55, s56")
    A(f"s_add_u32 s55, s55, {P1}")
    A("s_lshl_b32 s56, s22, 6")
    A("s_add_u32 s56, s56, s20")
    A("s_lshl_b32 s56, s56, 8")
    A("s_lshl_b32 s58, s21, 3")
    A("s_add_u32 s56, s56, s58")
    A(f"s_add_u32 s56, s56, {LG}")
    A("v_lshlrev_b32 v29, 11, v0")
    A("s_waitcnt lgkmcnt(0)")
    A("s_barrier")
    for k in range(4):
        A(f"ds_read_b64 v[{12+2*k}:{13+2*k}], v9 offset:{8192*k}")
    A("ds_read_b128 v[20:23], v10")
    A("v_mov_b32 v25, v39")
    A("v_mov_b32 v27, v39")
    A("s_waitcnt lgkmcnt(1)")
    A("v_add_f32 v12, v12, v14")
    A("v_add_f32 v13, v13, v15")
    A("v_add_f32 v16, v16, v18")
    A("v_add_f32 v17, v17, v19")
    A("v_add_f32 v24, v12, v16")
    A("v_add_f32 v26, v13, v17")
    A("buffer_store_dwordx4 v[24:27], v11, s[36:39], s55 offen sc1")
    A("s_waitcnt lgkmcnt(0)")
    A("v_add_f32 v20, v20, v21")
    A("v_add_f32 v22, v22, v23")
    A("v_add_f32 v38, v20, v22")
    A("s_mov_b64 exec, 0xff")
    A("buffer_store_dwordx2 v[38:39], v29, s[36:39], s56 offen sc1")
    A("s_mov_b64 exec, -1")
    stamp(6)
    A("s_cmp_lg_u32 s22, 0")
    A("s_cbranch_scc1 L_wavedone")
    A("s_lshl_b32 s55, s50, 14")
    A(f"s_add_u32 s55, s55, {P1}")
    for q in range(1, 4): A(f"s_add_u32 s{88+q}, s55, {4096*q}")
    A("s_lshl_b32 s56, s2, 8")
    A(f"s_add_u32 s56, s56, {LG}")
    A("v_lshlrev_b32 v28, 3, v28")
    A(f"s_mov_b32 s57, {maxpoll}")
    G0 = slot(4)
    A("s_mov_b32 s87, 15")
    def gload(q, fl):
        so = "s55" if q == 0 else f"s{88+q}"
        for k in range(4):
            r = G0 + 16*q + 4*k
            A(f"buffer_load_dwordx4 v[{r}:{r+3}], v6, s[36:39], {so} offen offset:{1024*k} {fl}")
    A("s_mov_b32 s94, 0")
    A.label("L_cpoll")
    A("buffer_load_dwordx2 v[30:31], v28, s[36:39], s56 offen sc1")
    if spec:
        for q in range(4):
            A(f"s_bitcmp0_b32 s94, {q}")
            A(f"s_cbranch_scc1 L_cs{q}")
            gload(q, "sc1")
            A.label(f"L_cs{q}")
    A("s_sub_u32 s57, s57, 1")
    A("s_waitcnt vmcnt(0)")
    A("v_cmp_eq_u32 vcc, v31, v39")
    A("s_cmp_eq_u32 s57, 0")
    A("s_cselect_b32 s93, -1, vcc_lo")
    for q in range(4):
        A(f"s_bitcmp0_b32 s87, {q}")
        A(f"s_cbranch_scc1 L_ci{q}")
        A(f"s_bfe_u32 s92, s93, {(8 << 16) | (8*q):#x}")
        A("s_cmp_lg_u32 s92, 0xff")
        A(f"s_cbranch_scc1 L_ci{q}")
        A(f"s_bitset0_b32 s87, {q}")
        if spec:
            A(f"s_bitcmp1_b32 s94, {q}")
            A(f"s_cbranch_scc1 L_ci{q}")
        gload(q, "nt" if opt else "sc1")
        A.label(f"L_ci{q}")
    A("s_cmp_eq_u32 s87, 0")
    A("s_cbranch_scc1 L_call")
    if spec:
        A("s_bcnt1_i32_b32 s92, s93")
        A(f"s_cmp_ge_u32 s92, {spec}")
        A("s_cselect_b32 s94, s87, 0")
        A("s_cbranch_scc1 L_cpoll")
    A(f"s_sleep {csleep}")
    A("s_branch L_cpoll")
    A.label("L_crest")
    A("s_sub_u32 s57, s57, 1")
    for q in range(4): gload(q, "sc1")
    A.label("L_call")
    tg = [G0 + 2*i + 1 for i in range(32)]
    A("s_waitcnt vmcnt(0)")
    A(f"v_min3_u32 v8, v{tg[0]}, v{tg[1]}, v39")
    A(f"v_max3_u32 v9, v{tg[0]}, v{tg[1]}, v39")
    for i in range(2, 32, 2):
        A(f"v_min3_u32 v8, v8, v{tg[i]}, v{tg[i+1]}")
        A(f"v_max3_u32 v9, v9, v{tg[i]}, v{tg[i+1]}")
    A("v_cmp_ne_u32 vcc, v8, v9")
    A("s_cmp_le_i32 s57, 0")
    A("s_cbranch_scc1 L_cdone")
    A("s_cmp_lg_u64 vcc, 0")
    A("s_cbranch_scc1 L_crest")
    A.label("L_cdone")
    stamp(7)
    regs0 = [G0 + 4*k for k in range(16)]
    n = 16
    while n > 1:
        for e in (0, 2):
            for i in range(n // 2):
                A(f"v_add_f32 v{regs0[i]+e}, v{regs0[i]+e}, v{regs0[i + n//2]+e}")
        n //= 2
    a0, a1 = G0, G0 + 2
    A(f"v_add_f32_dpp v30, v30, v30 quad_perm:[1,0,3,2] {DPPF}")
    A(f"v_mov_b32 v8, v{a0}")
    A(f"v_mov_b32 v9, v{a1}")
    A(f"v_add_f32_dpp v30, v30, v30 quad_perm:[2,3,0,1] {DPPF}")
    A(f"v_permlane32_swap_b32 v{a0}, v8")
    A(f"v_permlane32_swap_b32 v{a1}, v9")
    A(f"v_add_f32_dpp v30, v30, v30 row_ror:4 {DPPF}")
    A(f"v_add_f32 v8, v8, v{a0}")
    A(f"v_add_f32 v9, v9, v{a1}")
    A(f"v_add_f32_dpp v30, v30, v30 row_ror:8 {DPPF}")
    A("v_lshrrev_b32 v10, 1, v4")
    A("v_lshlrev_b32 v10, 2, v10")
    A("v_mov_b32 v31, v30")
    A("v_lshl_add_u32 v10, v3, 3, v10")
    A("v_and_b32 v11, 1, v4")
    A("v_permlane16_swap_b32 v30, v31")
    A("v_mov_b32 v28, 0x01000100")
    A("v_mov_b32 v29, 0x03020302")
    A("v_add_f32 v30, v30, v31")
    A("v_cmp_eq_u32 vcc, 1, v11")
    A("v_rcp_f32 v30, v30")
    A("s_nop 0")
    A("v_cndmask_b32 v11, v28, v29, vcc")
    A("v_mul_f32 v8, v8, v30")
    A("v_mul_f32 v9, v9, v30")
    A("v_cvt_pk_bf16_f32 v8, v8, v9")
    for T in range(4):
        A(f"ds_bpermute_b32 v{28+T}, v10, v8 offset:{32*T}")
    if p2t:
        A("v_mov_b32 v37, v6")
        A("s_lshl_b32 s55, s51, 10")
        A("s_lshl_b32 s56, s50, 12")
    else:
        A("v_lshlrev_b32 v37, 10, v0")
        A("s_lshl_b32 s55, s51, 16")
        A("s_lshl_b32 s56, s50, 4")
    A("s_add_u32 s55, s55, s56")
    A(f"s_add_u32 s55, s55, {P2}")
    for T in range(4):
        A(f"s_waitcnt lgkmcnt({3-T})")
        A(f"v_perm_b32 v32, v{28+T}, v{28+T}, v11")
        A("s_nop 1")
        for t in range(4):
            A(f"v_and_b32_dpp v{20+2*t}, v32, v33 quad_perm:[{t},{t},{t},{t}] {DPPF}")
            A(f"v_and_b32_dpp v{21+2*t}, v32, v34 quad_perm:[{t},{t},{t},{t}] {DPPF}")
        A("s_nop 0")
        for t in range(4):
            c1 = "0" if (T == 0 and t == 0) else "v[12:15]"
            c2 = "0" if (T == 0 and t == 0) else "v[16:19]"
            A(f"v_mfma_f32_16x16x16_bf16 v[12:15], v[{slot(T,4*t)}:{slot(T,4*t+1)}], v[{20+2*t}:{21+2*t}], {c1}")
            A(f"v_mfma_f32_16x16x16_bf16 v[16:19], v[{slot(T,4*t+2)}:{slot(T,4*t+3)}], v[{20+2*t}:{21+2*t}], {c2}")
    A("v_mov_b32 v25, v39")
    A("v_mov_b32 v27, v39")
    A("s_nop 7")
    A("v_mov_b32 v24, v12")
    A("v_mov_b32 v26, v16")
    for r in range(1, 4):
        A(f"v_mov_b32_dpp v24, v{12+r} quad_perm:[0,1,2,3] row_mask:0xf bank_mask:{1<<r:#x}")
        A(f"v_mov_b32_dpp v26, v{16+r} quad_perm:[0,1,2,3] row_mask:0xf bank_mask:{1<<r:#x}")
    A("buffer_store_dwordx4 v[24:27], v37, s[36:39], s55 offen sc1")
    stamp(8)
    A("v_mov_b32 v29, 0")
    if p2t:
        A("v_lshlrev_b32 v6, 12, v0")
        A("s_lshl_b32 s55, s2, 4")
    else:
        A("s_lshl_b32 s55, s2, 10")
    A(f"s_add_u32 s55, s55, {P2}")
    A("s_mov_b32 s40, s14")
    A("s_mov_b32 s41, s15")
    A("s_mov_b32 s42, 1024")
    A("s_mov_b32 s43, 0x00020000")
    A("s_lshr_b32 s56, s2, 2")
    A("s_lshl_b32 s56, s56, 4")
    A("s_and_b32 s58, s2, 3")
    A("s_lshl_b32 s58, s58, 1")
    A("s_add_u32 s56, s56, s58")
    A(f"s_mov_b32 s57, {maxpoll}")
    A.label("L_fpoll")
    A("buffer_load_dwordx4 v[12:15], v6, s[36:39], s55 offen sc1")
    A("s_waitcnt vmcnt(0)")
    A("v_cmp_ne_u32 vcc, v13, v39")
    A("v_cmp_ne_u32 s[58:59], v15, v39")
    A("s_sub_u32 s57, s57, 1")
    A("s_or_b64 vcc, vcc, s[58:59]")
    A("s_cbranch_scc0 L_fdone")
    A("s_cmp_eq_u32 s57, 0")
    A("s_cbranch_scc1 L_fdone")
    if fsleep: A(f"s_sleep {fsleep}")
    A("s_branch L_fpoll")
    A.label("L_fdone")
    stamp(1)
    for ctl in ("quad_perm:[1,0,3,2]", "quad_perm:[2,3,0,1]", "row_ror:4", "row_ror:8"):
        A(f"v_add_f32_dpp v12, v12, v12 {ctl} {DPPF}")
        A(f"v_add_f32_dpp v14, v14, v14 {ctl} {DPPF}")
        A("s_nop 0")
    for sw in ("v_permlane16_swap_b32", "v_permlane32_swap_b32"):
        A("v_mov_b32 v13, v12")
        A("v_mov_b32 v15, v14")
        A("s_nop 1")
        A(f"{sw} v12, v13")
        A(f"{sw} v14, v15")
        A("s_nop 1")
        A("v_add_f32 v12, v12, v13")
        A("v_add_f32 v14, v14, v15")
    A("v_cvt_pk_bf16_f32 v12, v12, v14")
    A("s_mov_b64 exec, 1")
    A("buffer_store_short v12, v29, s[40:43], s56 offen")
    A("buffer_store_short_d16_hi v12, v29, s[40:43], s56 offen offset:8")
    A("s_cmp_lg_u32 s2, 0")
    A("s_cbranch_scc1 L_noep")
    A("buffer_store_dword v39, v29, s[36:39], 0 offen sc1")
    A.label("L_noep")
    A("s_mov_b64 exec, -1")
    A.label("L_wavedone")
    if stamps:
        A.label("L_stamps")
        stamp(9)
        A("s_waitcnt lgkmcnt(0)")
        if dbgst:
            A("s_mov_b32 s92, s16")
            A("s_mov_b32 s93, s17")
            A("s_mov_b32 s94, 256")
            A("s_mov_b32 s95, 0x00020000")
            A("s_mov_b64 exec, 1")
            A("v_mov_b32 v10, 0")
            A("s_cmp_lg_u32 s22, 0")
            A("s_cbranch_scc1 L_end")
            A("s_cmp_eq_u32 s2, 5")
            A("s_cbranch_scc1 L_dbh")
            A("s_cmp_lg_u32 s2, 130")
            A("s_cbranch_scc1 L_end")
            for k, j in enumerate((2, 3, 5, 6, 7, 8, 1)):
                A(f"s_sub_u32 s96, s{60+2*j}, s60")
                A("v_mov_b32 v12, s96")
                A(f"buffer_store_dword v12, v10, s[92:95], 0 offen offset:{4*(9+k)}")
                A("s_nop 1")
            A("s_endpgm")
            A.label("L_dbh")
            for k, j in enumerate((2, 3, 4, 5, 6, 7, 8, 1, 9)):
                A(f"s_sub_u32 s96, s{60+2*j}, s60")
                A("v_mov_b32 v12, s96")
                A(f"buffer_store_dword v12, v10, s[92:95], 0 offen offset:{4*k}")
                A("s_nop 1")
            A("s_endpgm")
        A(f"s_add_u32 s92, s18, {STAMPS}")
        A("s_addc_u32 s93, s19, 0")
        A("s_mov_b32 s94, 0x1000000")
        A("s_mov_b32 s95, 0x00020000")
        A("s_mul_i32 s96, s2, 5")
        A("s_add_u32 s96, s96, s22")
        A(f"s_mul_i32 s96, s96, {8*NST}")
        A("v_mov_b32 v10, 0")
        for j in range(NST):
            A(f"v_mov_b32 v12, s{60+2*j}")
            A(f"v_mov_b32 v13, s{61+2*j}")
            A(f"buffer_store_dwordx2 v[12:13], v10, s[92:95], s96 offen offset:{8*j}")
            A("s_nop 1")
    A.label("L_end")
    A("s_endpgm")
    nv = VL0 + 16*max(NVL, 8)
    pre = ""
    if stamps:
        pre = "".join(f"  s_mov_b32 s{r}, 0\n" for r in range(60, 60+2*NST))
    txt = HEADER_COMMENT + f"; @launch grid=(256,1,1) block=(320,1,1) lds={LDS_BYTES}\n"
    txt += f""".amdgcn_target "amdgcn-amd-amdhsa--gfx950"
.text
.globl {KNAME}
.p2align 8
.type {KNAME},@function
{KNAME}:
""" + pre + A.text() + f""".section .rodata,"a"
.p2align 6
.amdhsa_kernel {KNAME}
  .amdhsa_next_free_vgpr {nv}
  .amdhsa_next_free_sgpr 102
  .amdhsa_accum_offset {(nv+3)//4*4}
  .amdhsa_group_segment_fixed_size 0
  .amdhsa_kernarg_size 64
  .amdhsa_user_sgpr_count 2
  .amdhsa_user_sgpr_kernarg_segment_ptr 1
  .amdhsa_system_sgpr_workgroup_id_x 1
.end_amdhsa_kernel
"""
    open(path, "w").write(txt)

if __name__ == "__main__":
    b = dict(pace=3, qsleep=8)
    gen("k6_a.s", D=7, **b)
    gen("k6_b.s", D=7, linK=True, **b)
    gen("k6_c.s", D=6, early=True, **b)
    gen("k6_d.s", D=4, early=True, **b)
    gen("k6_e.s", D=7, kb=4, jb=3, **b)
    gen("k6_f.s", D=7, kb=2, jb=3, **b)
    gen("k6_g.s", D=6, early=True, kb=4, jb=3, **b)
    gen("k6_h.s", D=7, kb=5, jb=2, **b)
```

```python
import gen2
b = dict(D=6, early=True, pace=4, qsleep=6, kb=3, jb=3)
gen2.gen("h2_nt.s", **b)
gen2.gen("h2_pl.s", pol="", **b)
gen2.gen("h2_sc1.s", pol="sc1", **b)
gen2.gen("h2_sc1nt.s", pol="sc1 nt", **b)
gen2.gen("h2_sc0nt.s", pol="sc0 nt", **b)
gen2.gen("h2_sc01nt.s", pol="sc0 sc1 nt", **b)
```

```python
import sys
HDR = """; @launch grid=({g},1,1) block=({b},1,1) lds={lds}
.amdgcn_target "amdgcn-amd-amdhsa--gfx950"
.text
.globl standalone__gqa_block_cached__decode_kernel
.p2align 8
.type standalone__gqa_block_cached__decode_kernel,@function
standalone__gqa_block_cached__decode_kernel:
"""
FTR = """
.section .rodata,"a"
.p2align 6
.amdhsa_kernel standalone__gqa_block_cached__decode_kernel
  .amdhsa_next_free_vgpr {nv}
  .amdhsa_next_free_sgpr 64
  .amdhsa_accum_offset {ao}
  .amdhsa_group_segment_fixed_size 0
  .amdhsa_kernarg_size 64
  .amdhsa_user_sgpr_count 2
  .amdhsa_user_sgpr_kernarg_segment_ptr 1
  .amdhsa_system_sgpr_workgroup_id_x 1
.end_amdhsa_kernel
"""
def gen(name, nwg=256, waves=4, R=32, flags="nt", mode="vgpr", pattern="contig", assign="chunk", tile=4096, stamps=False, force_nv=0, force_lds=0, hshift=0, gran=1, w5=False, kquad=False, noxor=False, swz=None, kb=7, jb=0, jitter=0, m0once=False, wpos=0, half=False):
    total = 128 << 20
    nw = nwg * waves
    per_wave = total // nw
    nloads = per_wave // 1024
    o = []
    lds = 0
    if mode == "lds":
        lds = waves * R * 1024
    lds = max(lds, force_lds)
    o.append(HDR.format(g=nwg, b=(waves+(1 if w5 else 0))*64, lds=lds))
    a = o.append
    def stamp(j):
        if stamps:
            a(f"  s_memrealtime s[{32+2*j}:{33+2*j}]")
    stamp(0)
    a(f"  s_cmp_ge_u32 s2, {nwg}")
    a("  s_cbranch_scc1 L_end")
    a("  s_load_dwordx4 s[4:7], s[0:1], 8")
    a("  s_load_dwordx2 s[20:21], s[0:1], 56")
    a("  v_lshrrev_b32 v1, 6, v0")
    a("  v_and_b32 v2, 63, v0")
    a("  s_nop 0")
    a("  v_readfirstlane_b32 s3, v1")
    a("  s_waitcnt lgkmcnt(0)")
    if w5:
        a("  s_barrier")
        a("  s_cmp_eq_u32 s3, 0")
        a("  s_cbranch_scc1 L_end")
        a("  s_sub_u32 s3, s3, 1")
    stamp(1)
    for base, (lo, hi) in ((8, (4, 5)), (12, (6, 7))):
        a(f"  s_mov_b32 s{base}, s{lo}")
        a(f"  s_mov_b32 s{base+1}, s{hi}")
        a(f"  s_mov_b32 s{base+2}, {total}")
        a(f"  s_mov_b32 s{base+3}, 0x00020000")
    if pattern == "contig":
        a("  v_lshlrev_b32 v3, 4, v2")
    elif pattern == "alay":
        a("  v_and_b32 v3, 15, v2")
        a("  v_lshlrev_b32 v3, 8, v3")
        a("  v_lshrrev_b32 v4, 4, v2")
        a("  v_lshlrev_b32 v4, 4, v4")
        a("  v_add_u32 v3, v3, v4")
    elif pattern == "quad":
        a("  v_bfe_u32 v3, v2, 2, 2")
        a("  v_lshlrev_b32 v3, 8, v3")
        a("  v_lshrrev_b32 v4, 4, v2")
        a("  v_lshlrev_b32 v4, 6, v4")
        a("  v_add_u32 v3, v3, v4")
        a("  v_and_b32 v4, 3, v2")
        a("  v_lshlrev_b32 v4, 4, v4")
        a("  v_add_u32 v3, v3, v4")
    a(f"  s_mul_i32 s16, s2, {waves}")
    a("  s_add_u32 s16, s16, s3")
    if assign == "chunk":
        a(f"  s_mul_i32 s17, s16, {per_wave}")
        step = tile
    elif assign == "wgtile":
        a(f"  s_mul_i32 s17, s2, {per_wave*waves}")
        a(f"  s_mul_i32 s18, s3, {tile}")
        a("  s_add_u32 s17, s17, s18")
        step = tile * waves
    elif assign == "inter":
        a(f"  s_mul_i32 s17, s16, {tile}")
        step = tile * nw
    elif assign == "head":
        wph = nw // 8
        a(f"  s_add_u32 s18, s2, {hshift}")
        a(f"  s_and_b32 s18, s18, 7")
        a(f"  s_lshr_b32 s19, s2, 3")
        a(f"  s_mul_i32 s19, s19, {waves}")
        a(f"  s_add_u32 s19, s19, s3")
        a(f"  s_mul_i32 s19, s19, {tile}")
        a(f"  s_lshl_b32 s17, s18, 24")
        a(f"  s_add_u32 s17, s17, s19")
        step = tile * wph
    elif assign == "head2":
        wph = nw // 8
        a(f"  s_lshr_b32 s18, s2, {(nwg//8).bit_length()-1}")
        a(f"  s_and_b32 s19, s2, {nwg//8-1}")
        a(f"  s_mul_i32 s19, s19, {waves}")
        a(f"  s_add_u32 s19, s19, s3")
        a(f"  s_mul_i32 s19, s19, {tile}")
        a(f"  s_lshl_b32 s17, s18, 24")
        a(f"  s_add_u32 s17, s17, s19")
        step = tile * wph
    elif assign == "bits":
        a(f"  s_and_b32 s18, s2, 7")
        a(f"  s_lshr_b32 s19, s2, 3")
        if half:
            a("  s_and_b32 s26, s2, 1")
            a("  s_and_b32 s18, s2, 6")
            a("  s_lshr_b32 s27, s2, 7")
            a("  s_add_u32 s18, s18, s27")
            a("  s_and_b32 s19, s19, 15")
            a("  s_lshl_b32 s26, s26, 4")
            a("  s_add_u32 s19, s19, s26")
        a(f"  s_and_b32 s26, s19, {(1<<wpos)-1}")
        a(f"  s_lshr_b32 s19, s19, {wpos}")
        a(f"  s_lshl_b32 s19, s19, {wpos+2}")
        a(f"  s_add_u32 s19, s19, s26")
        a(f"  s_lshl_b32 s26, s3, {wpos}")
        a(f"  s_add_u32 s19, s19, s26")
        a(f"  s_and_b32 s26, s19, {(1<<kb)-1}")
        a(f"  s_lshr_b32 s27, s19, {kb}")
        a(f"  s_lshl_b32 s27, s27, {kb+jb}")
        a(f"  s_add_u32 s26, s26, s27")
        tsh = tile.bit_length() - 1
        wb = (nw // 8).bit_length() - 1
        nb = (per_wave // tile).bit_length() - 1
        a(f"  s_lshl_b32 s26, s26, {tsh}")
        a(f"  s_lshl_b32 s17, s18, 24")
        a(f"  s_add_u32 s17, s17, s26")
        step = None
    lpt = tile // 1024
    assert R % lpt == 0 or lpt % R == 0
    if mode == "lds":
        a(f"  s_mul_i32 s22, s3, {R*1024}")
    a("  v_mov_b32 v8, 0")
    def load(i, srd, sub):
        if pattern in ("contig","quad"):
            off = sub * 1024
        else:
            off = (sub % 4) * 64 + (sub // 4) * 4096
        vo = "v3"
        if off > 4095:
            vo = f"v{4 + off // 4096}"
            off = off % 4096
        if kquad and srd == 8: vo = "v11"
        if swz: vo = f"v{12+sub}"
        if mode == "vgpr":
            a(f"  buffer_load_dwordx4 v[{16+4*i}:{16+4*i+3}], {vo}, s[{srd}:{srd+3}], s17 offen offset:{off} {flags}")
        else:
            if sub % 4 == 0 or not m0once:
                a(f"  s_add_u32 m0, s22, {i*1024 - off}" if i*1024-off >= 0 else f"  s_sub_u32 m0, s22, {off - i*1024}")
                a("  s_nop 0")
            a(f"  buffer_load_dwordx4 {vo}, s[{srd}:{srd+3}], s17 offen offset:{off} {flags} lds")
    if kquad:
        a("  v_bfe_u32 v11, v2, 2, 2")
        a("  v_lshlrev_b32 v11, 8, v11")
        a("  v_lshrrev_b32 v4, 4, v2")
        a("  v_lshlrev_b32 v4, 6, v4")
        a("  v_add_u32 v11, v11, v4")
        a("  v_and_b32 v4, 3, v2")
        a("  v_lshlrev_b32 v4, 4, v4")
        a("  v_add_u32 v11, v11, v4")
    if swz:
        a("  v_and_b32 v4, 15, v2")
        a("  v_lshrrev_b32 v5, 4, v2")
        for t in range(4):
            if swz == "full":
                a(f"  v_xor_b32 v{12+t}, {4*t}, v4")
                a(f"  v_xor_b32 v{12+t}, v{12+t}, v5")
            elif swz == "hi":
                a(f"  v_lshlrev_b32 v{12+t}, 2, v5")
                a(f"  v_xor_b32 v{12+t}, v{12+t}, v4")
            elif swz == "lo":
                a(f"  v_xor_b32 v{12+t}, v4, v5")
            elif swz == "row4":
                a(f"  v_mov_b32 v{12+t}, v4")
            a(f"  v_lshlrev_b32 v{12+t}, 4, v{12+t}")
            if swz == "row4":
                a(f"  v_lshl_add_u32 v{12+t}, v5, 10, v{12+t}")
                a(f"  v_add_u32 v{12+t}, {256*t - 1024*t + 4096}, v{12+t}")
            else:
                a(f"  v_lshl_add_u32 v{12+t}, v5, 8, v{12+t}")
        if swz == "row4":
            a("  s_sub_u32 s8, s8, 4096")
            a("  s_subb_u32 s9, s9, 0")
            a("  s_sub_u32 s12, s12, 4096")
            a("  s_subb_u32 s13, s13, 0")
            a("  s_add_u32 s10, s10, 4096")
            a("  s_add_u32 s14, s14, 4096")
    for k in (1, 2, 3):
        a(f"  v_add_u32 v{4+k}, {4096*k}, v3")
    a("  s_mov_b32 s23, s17")
    def consume(i):
        if noxor: return
        if mode == "vgpr":
            for r in range(4):
                a(f"  v_xor_b32 v8, v8, v{16+4*i+r}")
        else:
            a(f"  ds_read_b128 v[16:19], v9 offset:{i*1024}")
            a("  s_waitcnt lgkmcnt(0)")
            a("  v_xor_b32 v8, v8, v16")
    if mode == "lds":
        a("  v_lshlrev_b32 v9, 4, v2")
        a("  v_add_u32 v9, s22, v9")
    assert nloads % R == 0
    U = max(R, lpt)
    assert nloads % U == 0
    if jitter:
        a("  s_mul_i32 s26, s2, 0x9e3779b1")
        a("  s_lshr_b32 s26, s26, 29")
        a("L_jit:")
        a("  s_cmp_eq_u32 s26, 0")
        a("  s_cbranch_scc1 L_jitd")
        a(f"  s_sleep {jitter}")
        a("  s_sub_u32 s26, s26, 1")
        a("  s_branch L_jit")
        a("L_jitd:")
    a("  s_mov_b32 s27, 0")
    def adv():
        if step is not None:
            a(f"  s_add_u32 s17, s17, {step}")
        elif jb == 0:
            a(f"  s_add_u32 s17, s17, {tile << wb}")
        elif jb == nb:
            a(f"  s_add_u32 s17, s17, {tile << kb}")
        else:
            small = tile << kb
            big = (tile << (wb + jb)) - ((1 << jb) - 1) * small
            a("  s_add_u32 s27, s27, 1")
            a(f"  s_and_b32 s26, s27, {(1<<jb)-1}")
            a(f"  s_cselect_b32 s26, {small}, {big}") if False else None
            a(f"  s_mov_b32 s28, {small}")
            a(f"  s_cselect_b32 s26, s28, {big}")
            a("  s_add_u32 s17, s17, s26")
    cnt = 0
    for i in range(R):
        load(i, 8, cnt % lpt); cnt += 1
        if cnt % lpt == 0: adv()
    if stamps:
        stamp(2)
        a(f"  s_waitcnt vmcnt({R-1})")
        stamp(3)
    def loop(label, srd, iters):
        if iters <= 0: return
        a(f"  s_mov_b32 s24, {iters}")
        a(f"{label}:")
        c = 0
        for i0 in range(0, R, gran):
            a(f"  s_waitcnt vmcnt({R-gran})")
            for i in range(i0, i0+gran): consume(i)
            for i in range(i0, i0+gran):
                load(i, srd, c % lpt); c += 1
                if c % lpt == 0: adv()
        a("  s_sub_u32 s24, s24, 1")
        a("  s_cmp_lg_u32 s24, 0")
        a(f"  s_cbranch_scc1 {label}")
    assert R % lpt == 0
    loop("L_k", 8, nloads // R - 1)
    stamp(4)
    a("  s_mov_b32 s17, s23")
    loop("L_v", 12, nloads // R)
    for i in range(R):
        a(f"  s_waitcnt vmcnt({R-1-i})")
        consume(i)
    stamp(5)
    if stamps:
        a("  s_waitcnt lgkmcnt(0)")
        a("  s_add_u32 s44, s20, 0x2000000")
        a("  s_addc_u32 s45, s21, 0")
        a("  s_mov_b32 s46, 0x1000000")
        a("  s_mov_b32 s47, 0x00020000")
        a("  s_mul_i32 s25, s16, 56")
        a("  v_mov_b32 v10, 0")
        a("  s_getreg_b32 s48, hwreg(HW_REG_XCC_ID)")
        a("  s_getreg_b32 s49, hwreg(HW_REG_HW_ID)")
        a("  v_mov_b32 v12, s48")
        a("  v_mov_b32 v13, s49")
        a("  buffer_store_dwordx2 v[12:13], v10, s[44:47], s25 offen offset:48")
        a("  s_nop 1")
        for j in range(6):
            a(f"  v_mov_b32 v12, s{32+2*j}")
            a(f"  v_mov_b32 v13, s{33+2*j}")
            a(f"  buffer_store_dwordx2 v[12:13], v10, s[44:47], s25 offen offset:{8*j}")
            a("  s_nop 1")
    a("  s_mov_b32 s28, s20")
    a("  s_mov_b32 s29, s21")
    a("  s_mov_b32 s30, 0x1000000")
    a("  s_mov_b32 s31, 0x00020000")
    a(f"  s_mul_i32 s25, s2, {waves*256}")
    a("  v_lshlrev_b32 v10, 2, v0")
    a("  buffer_store_dword v8, v10, s[28:31], s25 offen")
    a("L_end:")
    a("  s_endpgm")
    nv = 16 + (4 * R if mode == "vgpr" else 4)
    nv = (nv + 7) // 8 * 8
    nv = max(nv, force_nv)
    assert nv <= 512
    ao = min(256, nv)
    o.append(FTR.format(nv=nv, ao=ao))
    open(name, "w").write("\n".join(o))
```

```python
from gen_stream import gen
b = dict(assign="bits", stamps=False, gran=4, waves=4, flags="nt", tile=4096, R=32, mode="lds", m0once=True)
for wp in range(6):
    gen(f"w_p{wp}_k43.s", wpos=wp, kb=4, jb=3, **b)
for wp in (0, 2, 3):
    gen(f"w_p{wp}_k43h.s", wpos=wp, kb=4, jb=3, half=True, **b)
for wp in (1, 3):
    gen(f"w_p{wp}_k33.s", wpos=wp, kb=3, jb=3, **b)
    gen(f"w_p{wp}_k53.s", wpos=wp, kb=5, jb=3, **b)
```

```python
import sys, math, struct

KNAME = "standalone__gqa_block_cached__decode_kernel"
HEADER_COMMENT = """; Kernarg layout for this problem (64 bytes, ptrs only, base s[0:1]):
;
; Hand-offs are {payload, tag} granules in d_ws; tag = LCG(epoch word found in d_ws at entry),
; the epoch word is advanced at the end of the launch.
"""
MG = 0x9000
CL = 0x80000
QG = 0x60000
LG = 0x400000
P1 = 0x100000
P2 = 0x200000
WS_USED = 0x500000
STAMPS = 0x2000000
C1 = math.log2(math.e) / math.sqrt(128.0)
def f32bits(x): return struct.unpack("<I", struct.pack("<f", x))[0]

class Asm:
    def __init__(self): self.l = []
    def __call__(self, s): self.l.append("  " + s)
    def label(self, s): self.l.append(s + ":")
    def text(self): return "\n".join(self.l) + "\n"

def gen(path, stamps=False, maxpoll=20000, pace=4, RL=7, NVL=8, D=6, kb=4, jb=3, rotmul=0,
        qsleep=6, csleep=2, fsleep=1, wopos="end", k32=True, gfl="nt", fpipe=0, fpipe_sleep=6, pad=0, remap=None, delta=0, t_mg=False, t_lg=False, ofl="", jr=False, p2s=4, lgs=3, b0mode="fwd", cqrot=0, b0n=2, qs=2, dyn=0, cl0=13, qbar=0, lgfull=False, p2q=False, x_noh=False, x_nowo=False, ilv=False, x_nomid=False, x_h=0, wo4=False, qgf="nt", wqf="nt"):
    A = Asm()
    NST = 10
    assert D < RL
    RS = 1024 + pad
    TS = 4 * RS
    RINGB = RL * TS
    L_SC = 4 * RINGB
    SCB = 8192 + 256 * max(delta, dyn)
    NP = 32 - dyn
    L_Q = L_SC + 4 * SCB
    L_TAG = L_Q + 1024
    L_M = L_TAG + 64
    L_L = L_M + 64
    LDS_BYTES = L_L + 64
    assert LDS_BYTES <= 163840
    VL0 = 80
    def slot(s, r=0): return VL0 + 16*s + r
    def sreg(j): return 60 + 2*j if j < 7 else {7: 4, 8: 10, 9: 16}[j]
    def stamp(j):
        if stamps: A(f"s_memrealtime s[{sreg(j)}:{sreg(j)+1}]")
    DPPF = "row_mask:0xf bank_mask:0xf"
    A("s_cmp_ge_u32 s2, 256")
    A("s_cbranch_scc1 L_end")
    A("s_load_dwordx16 s[4:19], s[0:1], 0")
    stamp(0)
    A("v_lshrrev_b32 v1, 6, v0")
    A("v_and_b32 v0, 63, v0")
    if jr:
        A("s_and_b32 s75, s2, 7")
        A("s_lshl_b32 s75, s75, 5")
        A("s_lshr_b32 s74, s2, 3")
        A("s_add_u32 s75, s75, s74")
    if remap:
        if remap == "x3":
            A("s_bfe_u32 s79, s2, 0x10001")
            A("s_xor_b32 s20, s2, s79")
            A("s_and_b32 s20, s20, 1")
            A("s_lshl_b32 s20, s20, 1")
            A("s_and_b32 s21, s2, 4")
            A("s_add_u32 s20, s20, s21")
        else:
            A("s_and_b32 s79, s2, 1")
            A("s_and_b32 s20, s2, 6")
        A("s_lshr_b32 s21, s2, 7")
        A("s_add_u32 s20, s20, s21")
        A("s_bfe_u32 s21, s2, 0x40003")
        if remap == "alt":
            A("s_lshl_b32 s21, s21, 1")
            A("s_add_u32 s21, s21, s79")
        else:
            A("s_lshl_b32 s23, s79, 4")
            A("s_add_u32 s21, s21, s23")
        A("s_lshl_b32 s2, s21, 3")
        A("s_add_u32 s2, s2, s20")
        A("v_readfirstlane_b32 s3, v1")
    else:
        A("s_and_b32 s20, s2, 7")
        A("v_readfirstlane_b32 s3, v1")
        A("s_lshr_b32 s21, s2, 3")
    if not jr: A("s_mov_b32 s75, s2")
    A("s_mov_b32 s27, 0x00020000")
    A("s_mov_b32 s31, 0x00020000")
    A("s_mov_b32 s39, 0x00020000")
    A(f"s_mov_b32 s38, {WS_USED}")
    A("s_cmp_lg_u32 s3, 0")
    A("s_cbranch_scc1 L_stream")
    QS = qs; KB = {2: 2, 4: 3}[QS]; NCQ = 32 // QS; CW = 512 // NCQ; RH = 512 // QS
    if x_noh:
        A("s_barrier")
        if qbar: A("s_barrier")
        A("s_barrier")
        A("s_endpgm")
    A("s_setprio 3")
    A(f"v_lshrrev_b32 v3, {KB}, v0")
    A(f"v_and_b32 v4, {(1<<KB)-1}, v0")
    A("v_lshlrev_b32 v1, 5, v3")
    A("v_lshlrev_b32 v2, 17, v3")
    A("v_lshl_add_u32 v2, v4, 4, v2")
    A(f"s_add_u32 s56, s21, {cqrot}")
    A(f"s_and_b32 s56, s56, {NCQ-1}")
    A(f"s_lshr_b32 s57, s21, {NCQ.bit_length()-1}")
    A("s_lshl_b32 s22, s20, 10")
    A(f"s_mul_i32 s23, s56, {CW*2}")
    A("s_add_u32 s22, s22, s23")
    A(f"s_mul_i32 s23, s57, {RH*8192}")
    A("s_add_u32 s22, s22, s23")
    A("s_sub_u32 s30, 0x400000, s22")
    A("s_mov_b32 s26, 1024")
    A(f"s_mul_i32 s58, s57, {RH*2}")
    A("s_mov_b32 s59, 8192")
    A("s_waitcnt lgkmcnt(0)")
    A("s_mov_b32 s24, s4")
    A("s_mov_b32 s25, s5")
    A("s_add_u32 s28, s10, s22")
    A("s_addc_u32 s29, s11, 0")
    A("s_load_dword s40, s[18:19], 0")
    if b0mode == "rev": A("s_barrier")
    A("buffer_load_dwordx4 v[24:27], v1, s[24:27], s58 offen")
    A("buffer_load_dwordx4 v[28:31], v1, s[24:27], s58 offen offset:16")
    A(f"buffer_load_dwordx4 v[40:43], v2, s[28:31], 0 offen {wqf}")
    for i in range(1, 16):
        A(f"buffer_load_dwordx4 v[{40+4*i}:{43+4*i}], v2, s[28:31], s59 offen {wqf}")
        if i < 15: A("s_add_u32 s59, s59, 8192")
    if b0mode == "fwd": A("s_barrier")
    A("s_mov_b32 s36, s18")
    A("s_mov_b32 s37, s19")
    if dyn:
        A("s_cmp_lg_u32 s79, 0")
        A("s_cbranch_scc1 L_nozero")
        A("s_lshl_b32 s23, s20, 4")
        A("s_add_u32 s23, s23, s21")
        A("s_lshl_b32 s23, s23, 9")
        A(f"s_add_u32 s23, s23, {CL}")
        A("v_lshlrev_b32 v34, 7, v0")
        A("v_mov_b32 v35, 0")
        A("s_mov_b64 exec, 15")
        A("buffer_store_dword v35, v34, s[36:39], s23 offen sc1")
        A("s_mov_b64 exec, -1")
        A.label("L_nozero")
    A("s_mov_b32 s41, 0x05040100")
    A("s_mov_b32 s42, 0x07060302")
    A(f"s_mul_i32 s43, s20, {4096*QS}")
    A(f"s_add_u32 s43, s43, {QG}")
    for r in range(1, QS): A(f"s_add_u32 s{49+r}, s43, {4096*r}")
    A("s_lshl_b32 s44, s57, 12")
    A("s_add_u32 s44, s44, s43")
    A(f"s_mul_i32 s23, s56, {CW*2}")
    A("s_add_u32 s44, s44, s23")
    A("v_lshrrev_b32 v3, 4, v0")
    A("v_lshlrev_b32 v3, 10, v3")
    A("v_lshl_add_u32 v3, v4, 4, v3")
    A("v_lshlrev_b32 v32, 4, v0")
    A(f"v_add_u32 v33, {L_Q}, v32")
    for ip in range(8):
        if ip % 2 == 0: A(f"s_waitcnt vmcnt({12-2*ip})")
        for dw in range(4):
            a_ = 40+8*ip+dw; b_ = 44+8*ip+dw
            t0 = 16 + (2*dw) % 8; t1 = 17 + (2*dw) % 8
            A(f"v_perm_b32 v{t0}, v{b_}, v{a_}, s41")
            A(f"v_perm_b32 v{t1}, v{b_}, v{a_}, s42")
            c0 = "0" if ip == 0 else f"v{8+2*dw}"
            c1 = "0" if ip == 0 else f"v{9+2*dw}"
            A(f"v_dot2_f32_bf16 v{8+2*dw}, v{t0}, v{24+ip}, {c0}")
            A(f"v_dot2_f32_bf16 v{9+2*dw}, v{t1}, v{24+ip}, {c1}")
    A("s_waitcnt lgkmcnt(0)")
    A("s_mul_i32 s40, s40, 0x41c64e6d")
    A("s_add_u32 s40, s40, 0x3039")
    A("v_mov_b32 v17, s40")
    for i in range(4): A(f"v_permlane32_swap_b32 v{8+i}, v{12+i}")
    A("v_mov_b32 v19, s40")
    for i in range(4): A(f"v_add_f32 v{8+i}, v{8+i}, v{12+i}")
    A("s_nop 1")
    for i in range(2): A(f"v_permlane16_swap_b32 v{8+i}, v{10+i}")
    em = {2: 0x000f000f, 4: 0x00ff00ff}[QS]
    A(f"s_mov_b32 s46, {em:#x}")
    for i in range(2): A(f"v_add_f32 v{8+i}, v{8+i}, v{10+i}")
    A(f"s_mov_b32 s47, {em:#x}")
    A("s_nop 0")
    if QS == 2:
        A(f"v_add_f32_dpp v8, v8, v8 row_ror:4 {DPPF}")
        A(f"v_add_f32_dpp v9, v9, v9 row_ror:4 {DPPF}")
        A("s_nop 0")
    A(f"v_add_f32_dpp v16, v8, v8 row_ror:8 {DPPF}")
    A(f"v_add_f32_dpp v18, v9, v9 row_ror:8 {DPPF}")
    if x_h == 1:
        if qbar: A("s_barrier")
        A("s_barrier")
        A("s_endpgm")
    A("s_mov_b64 exec, s[46:47]")
    A("buffer_store_dwordx4 v[16:19], v3, s[36:39], s44 offen sc1")
    A("s_mov_b64 exec, -1")
    if x_h == 2:
        if qbar: A("s_barrier")
        A("s_barrier")
        A("s_endpgm")
    stamp(1)
    A(f"s_mov_b32 s48, {maxpoll}")
    for _ in range(qsleep): A("s_sleep 15")
    if qbar: A("s_barrier")
    def qloads(fl):
        for k in range(4*QS):
            so = "s43" if k < 4 else f"s{49+k//4}"
            A(f"buffer_load_dwordx4 v[{40+4*k}:{43+4*k}], v32, s[36:39], {so} offen offset:{1024*(k%4)} {fl}")
    qloads(qgf)
    A("s_branch L_qchk")
    A.label("L_qpoll")
    qloads("sc1")
    A.label("L_qchk")
    A("s_waitcnt vmcnt(0)")
    tg = [41 + 2*i for i in range(8*QS)]
    A(f"v_min3_u32 v24, v{tg[0]}, v{tg[1]}, v19")
    A(f"v_max3_u32 v25, v{tg[0]}, v{tg[1]}, v19")
    for i in range(2, 8*QS, 2):
        A(f"v_min3_u32 v24, v24, v{tg[i]}, v{tg[i+1]}")
        A(f"v_max3_u32 v25, v25, v{tg[i]}, v{tg[i+1]}")
    A("v_cmp_ne_u32 vcc, v24, v25")
    A("s_sub_u32 s48, s48, 1")
    A("s_cmp_eq_u64 vcc, 0")
    A("s_cbranch_scc1 L_qdone")
    A("s_cmp_eq_u32 s48, 0")
    A("s_cbranch_scc1 L_qdone")
    A("s_sleep 15")
    A("s_branch L_qpoll")
    A.label("L_qdone")
    for r in range(1, QS):
        for k in range(4):
            A(f"v_add_f32 v{40+4*k}, v{40+4*k}, v{40+16*r+4*k}")
            A(f"v_add_f32 v{42+4*k}, v{42+4*k}, v{42+16*r+4*k}")
    for k in range(4):
        A(f"v_cvt_pk_bf16_f32 v{8+k}, v{40+4*k}, v{42+4*k}")
    A(f"v_mov_b32 v34, {L_TAG}")
    A("ds_write_b128 v33, v[8:11]")
    A("ds_write_b32 v34, v19")
    A("s_waitcnt lgkmcnt(0)")
    stamp(2)
    A("s_barrier")
    if stamps:
        A("s_mov_b32 s22, 4")
        A("s_branch L_stamps")
    A("s_endpgm")
    A.label("L_stream")
    A("s_sub_u32 s22, s3, 1")
    A("v_lshrrev_b32 v3, 4, v0")
    A("v_and_b32 v2, 15, v0")
    A("v_lshlrev_b32 v6, 4, v0")
    def wbase(dst, creg):
        A(f"s_lshl_b32 {dst}, {creg}, 2")
        A(f"s_add_u32 {dst}, {dst}, s22")
        A(f"s_and_b32 s47, {dst}, {(1<<kb)-1}")
        A(f"s_lshr_b32 {dst}, {dst}, {kb}")
        A(f"s_lshl_b32 {dst}, {dst}, {kb+jb}")
        A(f"s_add_u32 {dst}, {dst}, s47")
        A(f"s_lshl_b32 {dst}, {dst}, 12")
    wbase("s46", "s21")
    def fconst(i): return ((i & ((1 << jb) - 1)) << (12 + kb)) + ((i >> jb) << (19 + jb))
    def toff(first=False, simple=False):
        if first: A("s_mov_b32 s81, 0")
        A(f"s_and_b32 s82, s81, {(1<<jb)-1}")
        A(f"s_lshl_b32 s82, s82, {12+kb}")
        A(f"s_lshr_b32 s44, s81, {jb}")
        A(f"s_lshl_b32 s44, s44, {19+jb}")
        A("s_add_u32 s44, s44, s82")
        A("s_add_u32 s44, s44, s46")
        if delta and not simple:
            A("s_cmp_ge_u32 s81, 32")
            A("s_cselect_b32 s44, s80, s44")
        if dyn and not simple:
            A(f"s_sub_u32 s82, s81, {NP}")
            A("s_and_b32 s82, s82, 63")
            A("v_readlane_b32 s82, v62, s82")
            A(f"s_cmp_ge_u32 s81, {NP}")
            A("s_cselect_b32 s44, s82, s44")
    def tadv(simple=False):
        A("s_add_u32 s81, s81, 1")
        toff(simple=simple)
    A("s_lshl_b32 s23, s20, 24")
    A("s_mov_b32 s26, 0x1000000")
    A("s_mov_b32 s30, 0x1000000")
    toff(True, True)
    A(f"s_mul_i32 s84, s22, {RINGB}")
    A("s_waitcnt lgkmcnt(0)")
    A("s_add_u32 s24, s6, s23")
    A("s_addc_u32 s25, s7, 0")
    A("s_add_u32 s28, s8, s23")
    A("s_addc_u32 s29, s9, 0")
    if b0mode == "fwd": A("s_barrier")
    n_iss = 0
    def pacewait():
        if pace and n_iss >= pace: A(f"s_waitcnt vmcnt({4*(pace-1)})")
    for s in range(NVL):
        pacewait()
        for t in range(4):
            A(f"buffer_load_dwordx4 v[{slot(s,4*t)}:{slot(s,4*t+3)}], v6, s[28:31], s44 offen offset:{1024*t} nt")
        tadv(True)
        n_iss += 1
        if b0mode == "rev" and n_iss == b0n: A("s_barrier")
        if qbar and n_iss == qbar: A("s_barrier")
    A("s_mov_b32 s45, s81")
    toff(True, True)
    def dma():
        for t in range(4):
            A(f"buffer_load_dwordx4 v6, s[24:27], s44 offen offset:{1024*t} nt lds")
            if pad and t < 3:
                A(f"s_add_u32 m0, m0, {pad}")
                A("s_nop 0")
    for s in range(RL):
        A(f"s_add_u32 m0, s84, {TS*s}")
        pacewait()
        if not (pace and n_iss >= pace): A("s_nop 0")
        dma()
        tadv(True)
        n_iss += 1
        if qbar and n_iss == qbar: A("s_barrier")
    if delta:
        assert delta == 1
        A(f"s_xor_b32 s78, s21, {1 if remap == 'alt' else 16}")
        wbase("s80", "s78")
        A(f"s_add_u32 s80, s80, {fconst(31)}")
        A("s_cmp_eq_u32 s79, 0")
        A("s_cselect_b32 s78, 33, 31")
    elif dyn:
        A("s_and_b32 s78, s21, 15")
        wbase("s80", "s78")
        A("s_or_b32 s78, s21, 16")
        wbase("s74", "s78")
        A("s_lshl_b32 s23, s20, 4")
        A("s_and_b32 s78, s21, 15")
        A("s_add_u32 s23, s23, s78")
        A("s_lshl_b32 s23, s23, 2")
        A("s_add_u32 s23, s23, s22")
        A("s_lshl_b32 s23, s23, 7")
        A(f"s_add_u32 s23, s23, {CL}")
        A("v_mov_b32 v61, 1")
        A("v_mov_b32 v62, 0")
        A("v_mov_b32 v63, 0")
        A("s_mov_b32 s0, 1")
        A("s_mov_b32 s1, 0")
        A("s_mov_b32 s78, 64")
    else:
        A("s_mov_b32 s78, 32")
    A(f"s_sub_u32 s77, s78, {D}")
    A(f"s_sub_u32 s76, s78, {2*D}")
    if t_mg: A(f"s_mov_b32 s76, {NVL}")
    A("v_bfe_u32 v1, v0, 2, 2")
    A("v_and_b32 v4, 3, v0")
    A("s_mov_b32 s36, s18")
    A("s_mov_b32 s37, s19")
    A(f"s_mov_b32 s48, {f32bits(C1):#x}")
    A("s_lshr_b32 s49, s21, 2")
    A("s_lshl_b32 s50, s20, 3")
    A("s_add_u32 s50, s50, s49")
    A("s_and_b32 s51, s21, 3")
    A("s_lshl_b32 s52, s50, 16")
    A("s_lshl_b32 s53, s51, 8")
    A("s_add_u32 s52, s52, s53")
    A("s_add_u32 s32, s12, s52")
    A("s_addc_u32 s33, s13, 0")
    A(f"s_mov_b32 s34, {63*1024+256}")
    A("s_mov_b32 s35, 0x00020000")
    A(f"s_mul_i32 s54, s22, {SCB}")
    A(f"s_add_u32 s54, s54, {L_SC}")
    A("v_lshlrev_b32 v35, 2, v0")
    A("v_add_u32 v35, s54, v35")
    A("v_mov_b32 v7, v35")
    A(f"v_mul_u32_u24 v56, {RS}, v4")
    A("v_lshl_add_u32 v56, v1, 8, v56")
    A("v_lshl_add_u32 v56, v3, 4, v56")
    A("s_mov_b32 s96, 0x22222222")
    A("s_mov_b32 s97, 0x22222222")
    A("s_mov_b32 s98, 0x44444444")
    A("s_mov_b32 s99, 0x44444444")
    A("s_mov_b32 s100, 0x88888888")
    A("s_mov_b32 s101, 0x88888888")
    A("v_mov_b32 v36, 0xffff")
    A("v_mov_b32 v37, 0xffff0000")
    A("v_cndmask_b32 v33, v36, v37, s[96:97]")
    A("v_cndmask_b32 v34, 0, v36, s[98:99]")
    A("v_cndmask_b32 v33, v33, 0, s[98:99]")
    A("v_cndmask_b32 v34, v34, v37, s[100:101]")
    A("v_cndmask_b32 v33, v33, 0, s[100:101]")
    A("v_mov_b32 v29, 0xff800000")
    A("v_lshlrev_b32 v36, 8, v1")
    A("v_lshl_add_u32 v36, v3, 4, v36")
    A(f"v_add_u32 v36, {L_Q}, v36")
    A(f"v_mov_b32 v37, {L_TAG}")
    A("s_mov_b32 s47, 0")
    A("s_mov_b32 s85, s84")
    A(f"s_add_u32 s86, s84, {RINGB}")
    A("s_barrier")
    for m in range(4):
        A(f"ds_read_b128 v[{40+4*m}:{43+4*m}], v36 offset:{64*m}")
    A("ds_read_b32 v39, v37")
    A("v_add_u32 v60, s85, v56")
    A(f"s_add_u32 s83, s84, {TS*D}")
    stamp(2)
    def advance(issue=True):
        A(f"s_add_u32 s85, s85, {TS}")
        A("s_cmp_eq_u32 s85, s86")
        A("s_cselect_b32 s85, s84, s85")
        if issue:
            A(f"s_add_u32 s83, s83, {TS}")
            A("s_cmp_eq_u32 s83, s86")
            A("s_cselect_b32 s83, s84, s83")
    def ktile(wait, issue, loopctl):
        A(f"s_waitcnt vmcnt({wait})")
        for m in range(4):
            A(f"ds_read_b128 v[{64+4*m}:{67+4*m}], v60 offset:{64*m}")
        if issue and dyn:
            A(f"s_cmp_lg_u32 s47, {NP-D}")
            A("s_cbranch_scc1 L_nores")
            A(f"v_cmp_gt_u32 vcc, {2*dyn}, v61")
            A("v_and_b32 v36, 1, v61")
            A("v_lshrrev_b32 v37, 1, v61")
            A("v_mov_b32 v62, s80")
            A("v_mov_b32 v63, s74")
            A(f"s_and_b32 s82, vcc_lo, {(1 << (2*dyn)) - 1}")
            A("v_cmp_eq_u32 vcc, 1, v36")
            A("s_bcnt1_i32_b32 s78, s82")
            A(f"s_add_u32 s78, s78, {NP}")
            A("v_cndmask_b32 v62, v62, v63, vcc")
            A(f"v_lshl_add_u32 v62, v37, {12+kb}, v62")
            A(f"v_add_u32 v62, {fconst(NP)}, v62")
            A(f"s_sub_u32 s77, s78, {D}")
            A(f"s_sub_u32 s76, s78, {2*D}")
            toff()
            A.label("L_nores")
        if issue:
            A("s_mov_b32 m0, s83")
            A("s_cmp_lg_u32 s47, s77")
            A("s_cbranch_scc1 L_knosw")
            A("s_mov_b32 s24, s28")
            A("s_mov_b32 s25, s29")
            A("s_mov_b32 s81, s45")
            toff()
            A.label("L_knosw")
            dma()
            if dyn:
                A(f"s_sub_u32 s82, s47, {cl0-D}")
                A(f"s_cmp_ge_u32 s82, {2*dyn}")
                A("s_cbranch_scc1 L_nocl")
                A("s_mov_b64 exec, s[0:1]")
                A("buffer_atomic_add v61, v63, s[36:39], s23 offen sc0 sc1")
                A("s_mov_b64 exec, -1")
                A("s_lshl_b32 s0, s0, 1")
                A.label("L_nocl")
            tadv()
        A("s_add_u32 s47, s47, 1")
        for m in range(4):
            A(f"s_waitcnt lgkmcnt({3-m})")
            c = "0" if m == 0 else "v[12:15]"
            A(f"v_mfma_f32_16x16x32_bf16 v[12:15], v[{64+4*m}:{67+4*m}], v[{40+4*m}:{43+4*m}], {c}")
        A("s_nop 1")
        advance(True)
        A("v_add_u32 v60, s85, v56")
        A("v_cndmask_b32 v28, v12, v13, s[96:97]")
        A("v_cndmask_b32 v28, v28, v14, s[98:99]")
        A("v_cndmask_b32 v28, v28, v15, s[100:101]")
        if loopctl: A("s_cmp_lt_u32 s47, s78")
        A("v_max_f32 v29, v29, v28")
        A("ds_write_b32 v7, v28")
        A("v_add_u32 v7, 256, v7")
    for j in range(RL - D):
        ktile(4*(RL-1-j), False, False)
    A.label("L_kloop")
    ktile(4*D-4, True, True)
    A("s_cbranch_scc1 L_kloop")
    stamp(3)
    A(f"v_mov_b32 v36, {L_M}")
    A(f"v_max_f32_dpp v29, v29, v29 quad_perm:[1,0,3,2] {DPPF}")
    A("v_lshl_add_u32 v37, v1, 4, v36")
    A("s_lshl_b32 s55, s22, 2")
    A(f"v_max_f32_dpp v29, v29, v29 quad_perm:[2,3,0,1] {DPPF}")
    A("v_add_u32 v36, s55, v37")
    for sw in ("v_permlane16_swap_b32", "v_permlane32_swap_b32"):
        A("v_mov_b32 v30, v29")
        A("s_nop 1")
        A(f"{sw} v29, v30")
        A("s_nop 0")
        A("v_max_f32 v29, v29, v30")
    A("ds_write_b32 v36, v29")
    A("s_waitcnt lgkmcnt(0)")
    if not x_nomid: A("s_barrier")
    A("ds_read_b128 v[12:15], v37")
    A("ds_read_b32 v28, v35")
    A("v_mov_b32 v31, 0")
    A("s_lshl_b32 s55, s20, 10")
    A(f"s_add_u32 s55, s55, {MG}")
    A("s_lshl_b32 s56, s21, 5")
    A("s_add_u32 s56, s56, s55")
    A("v_lshlrev_b32 v36, 3, v1")
    A("v_add_u32 v60, s85, v6")
    A("s_waitcnt lgkmcnt(1)")
    A("v_max3_f32 v38, v12, v13, v14")
    A("v_max_f32 v38, v38, v15")
    for r in range(12, 20): A(f"v_mov_b32 v{r}, 0")
    A("v_mul_f32 v30, s48, v38")
    A("v_sub_f32 v30, 0, v30")
    A("s_cmp_lg_u32 s22, 0")
    A("s_cbranch_scc1 L_nopub")
    A("s_mov_b64 exec, 0x1111")
    A("buffer_store_dwordx2 v[38:39], v36, s[36:39], s56 offen sc1")
    A("s_mov_b64 exec, -1")
    A.label("L_nopub")
    stamp(4)
    def softmax(sreg):
        A(f"v_fma_f32 v37, v{sreg}, s48, v30")
        A("v_exp_f32 v37, v37")
        A("s_nop 0")
        A("v_cvt_pk_bf16_f32 v32, v37, v37")
        A("v_add_f32 v31, v31, v37")
        A("s_nop 0")
        xmasks()
    def xmasks():
        for t in range(4):
            A(f"v_and_b32_dpp v{20+2*t}, v32, v33 quad_perm:[{t},{t},{t},{t}] {DPPF}")
            A(f"v_and_b32_dpp v{21+2*t}, v32, v34 quad_perm:[{t},{t},{t},{t}] {DPPF}")
    def pv(base, t):
        A(f"v_mfma_f32_16x16x16_bf16 v[12:15], v[{base+4*t}:{base+4*t+1}], v[{20+2*t}:{21+2*t}], v[12:15]")
        A(f"v_mfma_f32_16x16x16_bf16 v[16:19], v[{base+4*t+2}:{base+4*t+3}], v[{20+2*t}:{21+2*t}], v[16:19]")
    def vtile(wait, issue, extra=None):
        A(f"s_waitcnt vmcnt({wait})")
        if extra is not None: A(f"ds_read_b32 v29, v61 offset:{256*extra}")
        A("ds_read_b32 v28, v35")
        for t in range(4):
            A(f"ds_read_b128 v[{64+4*t}:{67+4*t}], v60 offset:{RS*t}")
        if issue: A("s_mov_b32 m0, s83")
        A("v_add_u32 v35, 256, v35")
        if issue:
            dma()
            tadv()
        A("s_waitcnt lgkmcnt(4)")
        softmax(28)
        for t in range(4):
            A(f"s_waitcnt lgkmcnt({3-t})")
            pv(64, t)
        advance(issue)
        A("v_add_u32 v60, s85, v6")
        if extra is not None:
            softmax(29)
            A("s_nop 0")
            for t in range(4): pv(slot(extra), t)
    WO = slot(0)
    def wo_fetch():
        A("s_cmp_lg_u32 s22, 0")
        A("s_cbranch_scc1 L_nowo")
        if x_nowo: A("s_branch L_nowo")
        A("v_lshlrev_b32 v5, 12, v3")
        A("v_lshl_add_u32 v5, v2, 4, v5")
        for T in range(4):
            if T: A(f"s_mov_b32 s58, {16384*T}")
            so = "0" if T == 0 else "s58"
            for t in range(4):
                if wo4:
                    r = WO + 16*T + 4*t
                    A(f"buffer_load_dwordx4 v[{r}:{r+3}], v5, s[32:35], {so} offen offset:{1024*t} nt")
                    continue
                for hf in range(2):
                    r = WO + 16*T + 8*(t >> 1) + 4*hf + 2*(t & 1)
                    A(f"buffer_load_dwordx2 v[{r}:{r+1}], v5, s[32:35], {so} offen offset:{1024*t + 8*hf} nt")
        A.label("L_nowo")
    if ilv:
        A("v_mov_b32 v61, v35")
        A(f"v_add_u32 v35, {256*NVL}, v35")
        for s in range(NVL):
            vtile(4*D-4, True, extra=s)
            if s == 3 and wopos == "mid": wo_fetch()
        A(f"s_mov_b32 s47, {2*NVL}")
    else:
        for s in range(NVL):
            sc, sn = (28, 29) if s % 2 == 0 else (29, 28)
            A("s_waitcnt lgkmcnt(0)")
            if s + 1 < NVL: A(f"ds_read_b32 v{sn}, v35 offset:{256*(s+1)}")
            softmax(sc)
            A("s_nop 0")
            for t in range(4): pv(slot(s), t)
        A(f"v_add_u32 v35, {256*NVL}, v35")
        if wopos == "mid": wo_fetch()
        A(f"s_mov_b32 s47, {NVL}")
    A("v_lshlrev_b32 v36, 7, v4")
    A("v_lshl_add_u32 v36, v3, 5, v36")
    A("v_lshl_add_u32 v36, v1, 3, v36")
    A.label("L_vloop")
    A("s_cmp_lg_u32 s47, s76")
    A("s_cbranch_scc1 L_nomg")
    A("buffer_load_dwordx2 v[8:9], v36, s[36:39], s55 offen nt")
    A("buffer_load_dwordx2 v[10:11], v36, s[36:39], s55 offen offset:512 nt")
    A.label("L_nomg")
    A("s_add_u32 s47, s47, 1")
    vtile(4*D-4, True)
    A("s_cmp_lt_u32 s47, s77")
    A("s_cbranch_scc1 L_vloop")
    vtile(4*(D-1), False)
    A(f"s_mov_b32 s57, {maxpoll}")
    A.label("L_mchk")
    A("v_cmp_ne_u32 vcc, v9, v39")
    A("v_cmp_ne_u32 s[58:59], v11, v39")
    A("s_sub_u32 s57, s57, 1")
    A("s_or_b64 vcc, vcc, s[58:59]")
    A("s_cbranch_scc0 L_mok")
    A("s_cmp_eq_u32 s57, 0")
    A("s_cbranch_scc1 L_mok")
    A("s_sleep 2")
    A("buffer_load_dwordx2 v[8:9], v36, s[36:39], s55 offen sc1")
    A("buffer_load_dwordx2 v[10:11], v36, s[36:39], s55 offen offset:512 sc1")
    A("s_waitcnt vmcnt(0)")
    A("s_branch L_mchk")
    A.label("L_mok")
    A("v_max_f32 v8, v8, v10")
    A("v_mul_u32_u24 v40, 672, v1")
    A("v_mul_u32_u24 v41, 144, v3")
    A(f"v_max_f32_dpp v8, v8, v8 quad_perm:[1,0,3,2] {DPPF}")
    A("v_add3_u32 v40, v40, v41, s54")
    A("v_lshl_add_u32 v40, v4, 2, v40")
    A(f"v_max_f32_dpp v8, v8, v8 quad_perm:[2,3,0,1] {DPPF}")
    for sw in ("v_permlane16_swap_b32", "v_permlane32_swap_b32"):
        A("v_mov_b32 v9, v8")
        A("s_nop 1")
        A(f"{sw} v8, v9")
        A("s_nop 0")
        A("v_max_f32 v8, v8, v9")
    A("v_fma_f32 v8, v8, s48, v30")
    A("v_exp_f32 v8, -v8")
    A(f"v_mov_b32 v42, {L_L}")
    A("v_lshl_add_u32 v42, v1, 4, v42")
    A("s_lshl_b32 s55, s22, 2")
    A("v_add_u32 v42, s55, v42")
    A("s_mul_i32 s55, s22, 672")
    A(f"s_add_u32 s55, s55, {L_SC}")
    A("v_lshl_add_u32 v41, v2, 3, v41")
    A("v_add_u32 v41, s55, v41")
    A("s_lshl_b32 s55, s22, 4")
    A(f"s_add_u32 s55, s55, {L_L}")
    A("v_mov_b32 v43, s55")
    A("v_lshrrev_b32 v44, 5, v0")
    A("v_lshlrev_b32 v44, 14, v44")
    A("v_and_b32 v45, 31, v0")
    A("v_lshl_add_u32 v44, v45, 4, v44")
    A("s_lshl_b32 s55, s20, 2")
    A("s_add_u32 s55, s55, s22")
    A("s_lshl_b32 s55, s55, 15")
    A("s_lshl_b32 s56, s21, 9")
    A("s_add_u32 s55, s55, s56")
    A(f"s_add_u32 s88, s55, {P1}")
    A("s_lshl_b32 s56, s22, 6")
    A("s_add_u32 s56, s56, s20")
    A(f"s_lshl_b32 s56, s56, {5+lgs}")
    A(f"s_lshl_b32 s58, s21, {lgs}")
    A("s_add_u32 s56, s56, s58")
    A(f"s_add_u32 s89, s56, {LG}")
    if lgfull:
        assert lgs == 6
        A("v_lshrrev_b32 v46, 3, v0")
        A(f"v_lshlrev_b32 v46, {8+lgs}, v46")
        A("v_and_b32 v52, 7, v0")
        A("v_lshl_add_u32 v46, v52, 3, v46")
    else:
        A(f"v_lshlrev_b32 v46, {8+lgs}, v0")
    A("s_lshl_b32 s90, s50, 14")
    A(f"s_add_u32 s90, s90, {P1}")
    A(f"s_lshl_b32 s91, s2, {5+lgs}")
    A(f"s_add_u32 s91, s91, {LG}")
    A("v_and_b32 v47, 31, v0")
    A(f"v_lshlrev_b32 v47, {lgs}, v47")
    A("v_lshrrev_b32 v48, 1, v4")
    A("v_lshlrev_b32 v48, 2, v48")
    A("v_lshl_add_u32 v48, v3, 3, v48")
    A("v_mov_b32 v49, 0x01000100")
    A("v_mov_b32 v50, 0x03020302")
    A("s_mov_b32 s92, 0xaaaaaaaa")
    A("s_mov_b32 s93, 0xaaaaaaaa")
    A("v_cndmask_b32 v49, v49, v50, s[92:93]")
    if p2q:
        A("v_lshrrev_b32 v50, 2, v0")
        A("v_lshlrev_b32 v50, 12, v50")
        A("v_lshl_add_u32 v50, v4, 4, v50")
        A("s_lshl_b32 s92, s51, 16")
        A("s_lshl_b32 s93, s50, 6")
    else:
        A(f"v_lshlrev_b32 v50, {6+p2s}, v0")
        A(f"v_lshlrev_b32 v51, {p2s}, v0")
        A(f"s_lshl_b32 s92, s51, {12+p2s}")
        A(f"s_lshl_b32 s93, s50, {p2s}")
    A("s_add_u32 s92, s92, s93")
    A(f"s_add_u32 s92, s92, {P2}")
    for s in range(1, D):
        vtile(4*(D-1-s), False)
    if wopos == "end": wo_fetch()
    stamp(5)
    A(f"v_add_f32_dpp v31, v31, v31 quad_perm:[1,0,3,2] {DPPF}")
    A("v_mov_b32 v25, v39")
    A("v_mov_b32 v27, v39")
    A(f"v_add_f32_dpp v31, v31, v31 quad_perm:[2,3,0,1] {DPPF}")
    A("s_nop 0")
    A("v_mov_b32 v10, v31")
    for r in range(12, 14): A(f"v_mul_f32 v{r}, v{r}, v8")
    A("v_permlane16_swap_b32 v31, v10")
    for r in range(14, 16): A(f"v_mul_f32 v{r}, v{r}, v8")
    A("v_add_f32 v31, v31, v10")
    A("v_mov_b32 v10, v31")
    for r in range(16, 18): A(f"v_mul_f32 v{r}, v{r}, v8")
    A("v_permlane32_swap_b32 v31, v10")
    for r in range(18, 20): A(f"v_mul_f32 v{r}, v{r}, v8")
    A("v_add_f32 v31, v31, v10")
    for r in range(4):
        A(f"ds_write_b32 v40, v{12+r} offset:{32*r}")
        A(f"ds_write_b32 v40, v{16+r} offset:{32*r+16}")
    A("v_mul_f32 v31, v31, v8")
    A("ds_write_b32 v42, v31")
    A("s_waitcnt lgkmcnt(0)")
    A("s_barrier")
    for k in range(4):
        A(f"ds_read_b64 v[{12+2*k}:{13+2*k}], v41 offset:{SCB*k}")
    A("ds_read_b128 v[20:23], v43")
    A("s_waitcnt lgkmcnt(1)")
    A("v_add_f32 v12, v12, v14")
    A("v_add_f32 v13, v13, v15")
    A("v_add_f32 v16, v16, v18")
    A("v_add_f32 v17, v17, v19")
    A("v_add_f32 v24, v12, v16")
    A("v_add_f32 v26, v13, v17")
    A("buffer_store_dwordx4 v[24:27], v44, s[36:39], s88 offen sc1")
    A("s_waitcnt lgkmcnt(0)")
    A("v_add_f32 v20, v20, v21")
    A("v_add_f32 v22, v22, v23")
    A("v_add_f32 v38, v20, v22")
    if not lgfull: A("s_mov_b64 exec, 0xff")
    A("buffer_store_dwordx2 v[38:39], v46, s[36:39], s89 offen sc1")
    if not lgfull: A("s_mov_b64 exec, -1")
    stamp(6)
    A("s_cmp_lg_u32 s22, 0")
    A("s_cbranch_scc1 L_wavedone")
    G0 = slot(4)
    for q in range(1, 4): A(f"s_add_u32 s{52+q}, s90, {4096*q}")
    A(f"s_mov_b32 s57, {maxpoll}")
    A("s_mov_b32 s87, 15")
    A("s_mov_b32 s94, 0")
    def greset():
        A("v_mov_b32 v8, v39")
        A("v_mov_b32 v9, v39")
    greset()
    def gload(q, fl):
        so = "s90" if q == 0 else f"s{52+q}"
        for k in range(4):
            r = G0 + 16*q + 4*k
            A(f"buffer_load_dwordx4 v[{r}:{r+3}], v6, s[36:39], {so} offen offset:{1024*k} {fl}")
    A.label("L_cpoll")
    A("s_cmp_eq_u32 s87, 0")
    A("s_cbranch_scc1 L_cnolg")
    A("buffer_load_dwordx2 v[30:31], v47, s[36:39], s91 offen sc1")
    A.label("L_cnolg")
    A("s_sub_u32 s57, s57, 1")
    A("s_waitcnt vmcnt(0)")
    A("v_cmp_eq_u32 vcc, v31, v39")
    A("s_cmp_le_i32 s57, 0")
    A("s_cselect_b32 s93, -1, vcc_lo")
    if t_lg == 2: A("s_mov_b32 s93, -1")
    A("s_mov_b32 s95, s94")
    A("s_mov_b32 s94, 0")
    for q in range(4):
        A(f"s_bitcmp0_b32 s87, {q}")
        A(f"s_cbranch_scc1 L_ci{q}")
        A(f"s_bfe_u32 s58, s93, {(8 << 16) | (8*q):#x}")
        A("s_cmp_lg_u32 s58, 0xff")
        A(f"s_cbranch_scc1 L_ci{q}")
        gload(q, gfl)
        A(f"s_bitset0_b32 s87, {q}")
        A(f"s_bitset1_b32 s94, {q}")
        A.label(f"L_ci{q}")
    for q in range(4):
        A(f"s_bitcmp0_b32 s95, {q}")
        A(f"s_cbranch_scc1 L_cs{q}")
        r = G0 + 16*q
        for k in range(4):
            A(f"v_min3_u32 v8, v8, v{r+4*k+1}, v{r+4*k+3}")
            A(f"v_max3_u32 v9, v9, v{r+4*k+1}, v{r+4*k+3}")
        A(f"v_add_f32 v14, v{r}, v{r+4}")
        A(f"v_add_f32 v15, v{r+2}, v{r+6}")
        A(f"v_add_f32 v16, v{r+8}, v{r+12}")
        A(f"v_add_f32 v17, v{r+10}, v{r+14}")
        A(f"v_add_f32 v{64+2*q}, v14, v16")
        A(f"v_add_f32 v{65+2*q}, v15, v17")
        A.label(f"L_cs{q}")
    A("s_cmp_lg_u32 s94, 0")
    A("s_cbranch_scc1 L_cwait")
    A("s_cmp_eq_u32 s87, 0")
    A("s_cbranch_scc1 L_call")
    A(f"s_sleep {csleep}") if csleep else None
    A("s_branch L_cpoll")
    A.label("L_cwait")
    A("s_cmp_lg_u32 s87, 0")
    A("s_cbranch_scc1 L_cpoll")
    A(f"v_add_f32_dpp v28, v30, v30 quad_perm:[1,0,3,2] {DPPF}")
    A("s_nop 1")
    A(f"v_add_f32_dpp v28, v28, v28 quad_perm:[2,3,0,1] {DPPF}")
    A("s_nop 1")
    A(f"v_add_f32_dpp v28, v28, v28 row_ror:4 {DPPF}")
    A("s_nop 1")
    A(f"v_add_f32_dpp v28, v28, v28 row_ror:8 {DPPF}")
    A("s_nop 0")
    A("v_mov_b32 v29, v28")
    A("s_nop 1")
    A("v_permlane16_swap_b32 v28, v29")
    A("s_nop 0")
    A("v_add_f32 v28, v28, v29")
    A("v_rcp_f32 v28, v28")
    if wo4:
        for u in range(8):
            r = WO + 8*u
            A(f"v_swap_b32 v{r+2}, v{r+4}")
            A(f"v_swap_b32 v{r+3}, v{r+5}")
    A("s_branch L_cpoll")
    A.label("L_call")
    A("v_add_f32 v12, v64, v66")
    A("v_add_f32 v13, v65, v67")
    A("v_add_f32 v14, v68, v70")
    A("v_add_f32 v15, v69, v71")
    A("v_cmp_ne_u32 vcc, v8, v9")
    A("v_add_f32 v12, v12, v14")
    A("v_add_f32 v13, v13, v15")
    A("v_mov_b32 v14, v12")
    A("v_mov_b32 v15, v13")
    A("s_cmp_le_i32 s57, 0")
    A("s_cbranch_scc1 L_cdone")
    A("s_cmp_eq_u64 vcc, 0")
    A("s_cbranch_scc1 L_cdone")
    greset()
    for q in range(4): gload(q, "sc1")
    A("s_mov_b32 s94, 15")
    A("s_branch L_cpoll")
    A.label("L_cdone")
    if t_lg:
        A.label("L_tl")
        A("buffer_load_dwordx2 v[30:31], v47, s[36:39], s91 offen sc1")
        A("s_waitcnt vmcnt(0)")
        A("v_cmp_ne_u32 vcc, v31, v39")
        A("s_nop 1")
        A("s_cmp_lg_u64 vcc, 0")
        A("s_cbranch_scc1 L_tl")
        A(f"v_add_f32_dpp v28, v30, v30 quad_perm:[1,0,3,2] {DPPF}")
        A("s_nop 1")
        A(f"v_add_f32_dpp v28, v28, v28 quad_perm:[2,3,0,1] {DPPF}")
        A("s_nop 1")
        A(f"v_add_f32_dpp v28, v28, v28 row_ror:4 {DPPF}")
        A("s_nop 1")
        A(f"v_add_f32_dpp v28, v28, v28 row_ror:8 {DPPF}")
        A("s_nop 0")
        A("v_mov_b32 v29, v28")
        A("s_nop 1")
        A("v_permlane16_swap_b32 v28, v29")
        A("s_nop 0")
        A("v_add_f32 v28, v28, v29")
        A("v_rcp_f32 v28, v28")
        A("s_nop 1")
    stamp(7)
    A("v_permlane32_swap_b32 v12, v14")
    A("v_permlane32_swap_b32 v13, v15")
    A(f"s_lshl_b32 s55, s75, {6+p2s}")
    A("v_add_f32 v12, v12, v14")
    A("v_add_f32 v13, v13, v15")
    A("v_mul_f32 v12, v12, v28")
    A("v_mul_f32 v13, v13, v28")
    A("v_cvt_pk_bf16_f32 v12, v12, v13")
    for T in range(4):
        A(f"ds_bpermute_b32 v{28+T}, v48, v12 offset:{32*T}")
    A(f"s_add_u32 s55, s55, {P2}")
    A("s_mov_b32 s40, s14")
    A("s_mov_b32 s41, s15")
    A("s_mov_b32 s42, 1024")
    A("s_mov_b32 s43, 0x00020000")
    for T in range(4):
        A(f"s_waitcnt lgkmcnt({3-T})")
        A(f"v_perm_b32 v32, v{28+T}, v{28+T}, v49")
        A("s_nop 1")
        xmasks()
        if T == 0: A("s_nop 0")
        for u in range(2):
            c1 = "0" if (u == 0 and T == 0) else "v[12:15]"
            c2 = "0" if (u == 0 and T == 0) else "v[16:19]"
            r = WO + 16*T + 8*u
            A(f"v_mfma_f32_16x16x32_bf16 v[12:15], v[{r}:{r+3}], v[{20+4*u}:{23+4*u}], {c1}")
            A(f"v_mfma_f32_16x16x32_bf16 v[16:19], v[{r+4}:{r+7}], v[{20+4*u}:{23+4*u}], {c2}")
    A("v_mov_b32 v41, v39")
    A("v_mov_b32 v43, v39")
    A("s_lshr_b32 s56, s75, 2")
    A("s_lshl_b32 s56, s56, 4")
    A("s_and_b32 s58, s75, 3")
    A("s_lshl_b32 s58, s58, 1")
    A("s_add_u32 s56, s56, s58")
    A("v_mov_b32 v40, v12")
    for r in range(1, 4):
        A(f"v_mov_b32_dpp v40, v{12+r} quad_perm:[0,1,2,3] row_mask:0xf bank_mask:{1<<r:#x}")
    A("v_mov_b32 v42, v16")
    for r in range(1, 4):
        A(f"v_mov_b32_dpp v42, v{16+r} quad_perm:[0,1,2,3] row_mask:0xf bank_mask:{1<<r:#x}")
    A("buffer_store_dwordx4 v[40:43], v50, s[36:39], s92 offen sc1")
    stamp(8)
    if p2q:
        A("s_and_b32 s58, s2, 3")
        A("s_cmp_lg_u32 s58, 0")
        A("s_cbranch_scc1 L_wavedone")
        A("s_lshr_b32 s58, s2, 2")
        A("s_lshl_b32 s55, s58, 12")
        A(f"s_add_u32 s55, s55, {P2}")
        A("s_lshl_b32 s56, s58, 4")
        A("v_lshlrev_b32 v29, 1, v4")
        A(f"s_mov_b32 s57, {maxpoll}")
        A.label("L_fpoll")
        for k in range(4):
            A(f"buffer_load_dwordx4 v[{64+4*k}:{67+4*k}], v6, s[36:39], s55 offen offset:{1024*k} sc1")
        A("s_sub_u32 s57, s57, 1")
        A("s_waitcnt vmcnt(0)")
        A("v_min3_u32 v8, v65, v67, v39")
        A("v_max3_u32 v9, v65, v67, v39")
        A("v_add_f32 v12, v64, v68")
        A("v_add_f32 v14, v66, v70")
        for k in range(1, 4):
            A(f"v_min3_u32 v8, v8, v{65+4*k}, v{67+4*k}")
            A(f"v_max3_u32 v9, v9, v{65+4*k}, v{67+4*k}")
        A("v_add_f32 v13, v72, v76")
        A("v_add_f32 v15, v74, v78")
        A("v_cmp_ne_u32 vcc, v8, v9")
        A("v_add_f32 v12, v12, v13")
        A("v_add_f32 v14, v14, v15")
        A("s_cmp_eq_u32 s57, 0")
        A("s_cbranch_scc1 L_fdone")
        A("s_cmp_eq_u64 vcc, 0")
        A("s_cbranch_scc1 L_fdone")
        if fsleep: A(f"s_sleep {fsleep}")
        A("s_branch L_fpoll")
        A.label("L_fdone")
        stamp(1)
        for ctl in ("row_ror:4", "row_ror:8"):
            A(f"v_add_f32_dpp v12, v12, v12 {ctl} {DPPF}")
            A(f"v_add_f32_dpp v14, v14, v14 {ctl} {DPPF}")
            A("s_nop 0")
        for sw in ("v_permlane16_swap_b32", "v_permlane32_swap_b32"):
            A("v_mov_b32 v13, v12")
            A("v_mov_b32 v15, v14")
            A("s_nop 0")
            A(f"{sw} v12, v13")
            A(f"{sw} v14, v15")
            A("s_nop 0")
            A("v_add_f32 v12, v12, v13")
            A("v_add_f32 v14, v14, v15")
        A("v_cvt_pk_bf16_f32 v12, v12, v14")
        A("s_mov_b64 exec, 15")
        A(f"buffer_store_short v12, v29, s[40:43], s56 offen {ofl}")
        A(f"buffer_store_short_d16_hi v12, v29, s[40:43], s56 offen offset:8 {ofl}")
        A("s_mov_b64 exec, 1")
    else:
        A("v_mov_b32 v29, 0")
        A(f"s_mov_b32 s57, {maxpoll}")
        if not fpipe:
            A.label("L_fpoll")
            A("buffer_load_dwordx4 v[12:15], v51, s[36:39], s55 offen sc1")
            A("s_sub_u32 s57, s57, 1")
            A("s_waitcnt vmcnt(0)")
            A("v_cmp_ne_u32 vcc, v13, v39")
            A("v_cmp_ne_u32 s[58:59], v15, v39")
            A("s_cmp_eq_u32 s57, 0")
            A("s_cbranch_scc1 L_fdone")
            A("s_or_b64 vcc, vcc, s[58:59]")
            A("s_cbranch_scc0 L_fdone")
            if fsleep: A(f"s_sleep {fsleep}")
            A("s_branch L_fpoll")
        else:
            regs = [64 + 4*i for i in range(fpipe)]
            for i, r in enumerate(regs):
                A(f"buffer_load_dwordx4 v[{r}:{r+3}], v6, s[36:39], s55 offen sc1")
                if i + 1 < fpipe: A(f"s_sleep {fpipe_sleep}")
            A.label("L_fpoll")
            for i, r in enumerate(regs):
                A(f"s_waitcnt vmcnt({fpipe-1})")
                A(f"v_cmp_ne_u32 vcc, v{r+1}, v39")
                A(f"v_cmp_ne_u32 s[58:59], v{r+3}, v39")
                A(f"v_mov_b32 v12, v{r}")
                A(f"v_mov_b32 v14, v{r+2}")
                A("s_or_b64 vcc, vcc, s[58:59]")
                A("s_cbranch_scc0 L_fdone")
                A(f"buffer_load_dwordx4 v[{r}:{r+3}], v6, s[36:39], s55 offen sc1")
            A("s_sub_u32 s57, s57, 1")
            A("s_cmp_lg_u32 s57, 0")
            A("s_cbranch_scc1 L_fpoll")
        A.label("L_fdone")
        stamp(1)
        for ctl in ("quad_perm:[1,0,3,2]", "quad_perm:[2,3,0,1]", "row_ror:4", "row_ror:8"):
            A(f"v_add_f32_dpp v12, v12, v12 {ctl} {DPPF}")
            A(f"v_add_f32_dpp v14, v14, v14 {ctl} {DPPF}")
            A("s_nop 0")
        for sw in ("v_permlane16_swap_b32", "v_permlane32_swap_b32"):
            A("v_mov_b32 v13, v12")
            A("v_mov_b32 v15, v14")
            A("s_nop 0")
            A(f"{sw} v12, v13")
            A(f"{sw} v14, v15")
            A("s_nop 0")
            A("v_add_f32 v12, v12, v13")
            A("v_add_f32 v14, v14, v15")
        A("v_cvt_pk_bf16_f32 v12, v12, v14")
        A("s_mov_b64 exec, 1")
        A(f"buffer_store_short v12, v29, s[40:43], s56 offen {ofl}")
        A(f"buffer_store_short_d16_hi v12, v29, s[40:43], s56 offen offset:8 {ofl}")
    A("s_cmp_lg_u32 s2, 0")
    A("s_cbranch_scc1 L_noep")
    A("buffer_store_dword v39, v29, s[36:39], 0 offen sc1")
    A.label("L_noep")
    A("s_mov_b64 exec, -1")
    A.label("L_wavedone")
    if stamps:
        A.label("L_stamps")
        stamp(9)
        A("s_waitcnt lgkmcnt(0)")
        A(f"s_add_u32 s92, s18, {STAMPS}")
        A("s_addc_u32 s93, s19, 0")
        A("s_mov_b32 s94, 0x1000000")
        A("s_mov_b32 s95, 0x00020000")
        A("s_mul_i32 s96, s2, 5")
        A("s_add_u32 s96, s96, s22")
        A(f"s_mul_i32 s96, s96, {8*NST}")
        A("v_mov_b32 v10, 0")
        for j in range(NST):
            A(f"v_mov_b32 v12, s{sreg(j)}")
            A(f"v_mov_b32 v13, s{sreg(j)+1}")
            A(f"buffer_store_dwordx2 v[12:13], v10, s[92:95], s96 offen offset:{8*j}")
            A("s_nop 1")
    A.label("L_end")
    A("s_endpgm")
    nv = VL0 + 16*max(NVL, 8)
    pre = ""
    if stamps:
        pre = "".join(f"  s_mov_b32 s{r}, 0\n" for r in range(60, 74))
    txt = HEADER_COMMENT + f"; @launch grid=(256,1,1) block=(320,1,1) lds={LDS_BYTES}\n"
    txt += f""".amdgcn_target "amdgcn-amd-amdhsa--gfx950"
.text
.globl {KNAME}
.p2align 8
.type {KNAME},@function
{KNAME}:
""" + pre + A.text() + f""".section .rodata,"a"
.p2align 6
.amdhsa_kernel {KNAME}
  .amdhsa_next_free_vgpr {nv}
  .amdhsa_next_free_sgpr 102
  .amdhsa_accum_offset {(nv+3)//4*4}
  .amdhsa_group_segment_fixed_size 0
  .amdhsa_kernarg_size 64
  .amdhsa_user_sgpr_count 2
  .amdhsa_user_sgpr_kernarg_segment_ptr 1
  .amdhsa_system_sgpr_workgroup_id_x 1
  .amdhsa_float_denorm_mode_32 3
.end_amdhsa_kernel
"""
    open(path, "w").write(txt)

if __name__ == "__main__":
    b = dict(csleep=4, wopos="mid", remap="half", delta=1, qsleep=0, qbar=8)
    gen("u1_a.s", **b)
    gen("u1_b.s", lgfull=True, lgs=6, **b)
    gen("u1_c.s", p2q=True, **b)
    gen("u1_d.s", p2q=True, lgfull=True, lgs=6, **b)
    gen("u1_a_st.s", stamps=True, **b)
    gen("u1_b_st.s", stamps=True, lgfull=True, lgs=6, **b)
    gen("u1_d_st.s", stamps=True, p2q=True, lgfull=True, lgs=6, **b)
```

```python
import gen5
gen5.HEADER_COMMENT = gen5.HEADER_COMMENT.replace("One launch, 256 workgroups (kv head g = wg&7, chunk c = wg>>3) of 5 waves:", "One launch, 256 workgroups (32 per kv head: head/chunk decoded from the id at entry) of 5 waves:").replace("summed by one reducer per column pair.", "summed by one reducer per 8 output columns.")
gen5.gen("standalone__gqa_block_cached__decode.s", csleep=2, fsleep=1, gfl="sc1", wopos="end", wo4=True,
         qsleep=0, qbar=10, pace=6, D=5, p2q=True, lgfull=True, lgs=6, remap="half", delta=1, qs=4, qgf="")
```
